```python
import torch

def _softmax(x, axis=-1):
    return torch.softmax(x, dim=axis)
def _gelu(x):
    return torch.nn.functional.gelu(x, approximate="tanh")
def _silu(x):
    return torch.nn.functional.silu(x)
def _sigmoid(x):
    return torch.sigmoid(x)
def _layernorm(x, axis=-1, eps=1e-5):
    m = x.mean(dim=axis, keepdim=True)
    v = x.var(dim=axis, keepdim=True, unbiased=False)
    return (x - m) / torch.sqrt(v + eps)
def _scatter_add(tgt, idx, src, axis=0):
    return tgt.clone().index_add_(axis, idx, src)
def _segment_sum(src, seg, n):
    out = torch.zeros((n,) + src.shape[1:], dtype=src.dtype)
    return out.index_add_(0, seg, src)
def _pad(x, pw):
    flat = tuple(v for pair in reversed(pw) for v in pair)
    return torch.nn.functional.pad(x, flat)

kernel_name = 'standalone__mha_block_cached__near_ridge'

def setup_inputs():

    _w = (lambda a: (lambda t: t.to(torch.bfloat16) if t.is_floating_point() else t)(torch.as_tensor(a)))
    B, Sq, D = 8, 128, 576
    H, Sk, Dh = 32, 1024, 128
    return {
        "x": _w((lambda *s: torch.randn(*s, dtype=torch.bfloat16) * 0.8)(B, Sq, D)),
        "k_cache": _w((lambda *s: torch.randn(*s, dtype=torch.bfloat16) * 0.8)(B, H, Sk, Dh)),
        "v_cache": _w((lambda *s: torch.randn(*s, dtype=torch.bfloat16) * 0.05)(B, H, Sk, Dh)),
        "wq": _w((lambda *s: torch.randn(*s, dtype=torch.bfloat16) * 0.8)(D, H * Dh) * (D ** -0.5)),
        "wo": _w((lambda *s: torch.randn(*s, dtype=torch.bfloat16) * 0.05)(H * Dh, D) * ((H * Dh) ** -0.5)),
    }

def reference(x, k_cache, v_cache, wq, wo):
    B, Sq, D = x.shape
    H, Dh = 32, 128
    q = (lambda x, *d: x.permute(*d))((x @ wq).reshape(B, Sq, H, Dh), 0, 2, 1, 3)
    scores = torch.einsum("bhqd,bhkd->bhqk", q, k_cache) * (Dh ** -0.5)
    p = _softmax(scores, axis=-1)
    o = torch.einsum("bhqk,bhkd->bhqd", p, v_cache)
    return (lambda x, *d: x.permute(*d))(o, 0, 2, 1, 3).reshape(B, Sq, H * Dh) @ wo
```

```python
from gen_common import *

SCALE_LOG2E = (128 ** -0.5) * 1.4426950408889634

def f32hex(x):
    import struct
    return "0x%08x" % struct.unpack("<I", struct.pack("<f", x))[0]

def gen_attn(name, NS=4, DIST=3):
    SK = 1024
    NSTEP = SK // 64
    SLOT = 32768
    a = Asm()
    SRD_K, SRD_V, SRD_Q, SRD_O = 4, 8, 12, 16
    S_BH, S_WAVE, S_QB, S_G = 20, 21, 22, 23
    S_KVOFF = 24
    S_T0, S_T1, S_T2 = 25, 26, 27
    S_C = 28
    S_CNT = 29
    S_LDSW = 30
    S_QOFF = 31
    V_LANE = 1
    V_KOFF0, V_KOFF1, V_VOFF = 2, 3, 4
    V_KAD = 5
    V_VAD = 13
    V_KC = 17
    V_VC = 25
    V_M, V_L, V_ALPHA = 29, 30, 31
    V_T = 32
    V_P = 40
    V_Q = 48
    V_S = 80
    V_KF = 96
    V_VF = 128
    V_O = 160
    V_END = 224

    a(f"s_cmp_ge_u32 s2, 256")
    a(f"s_cbranch_scc1 {name}_done")
    srd_from_karg(a, SRD_K, S_T0, KA_K, 8 * 32 * 1024 * 128 * 2)
    srd_from_karg(a, SRD_V, S_T0, KA_V, 8 * 32 * 1024 * 128 * 2)
    srd_from_karg(a, SRD_Q, S_T0, KA_WS, 8 * 1024 * 1024, 0)
    srd_from_karg(a, SRD_O, S_T0, KA_WS, 8 * 1024 * 1024, 8 * 1024 * 1024)
    a(f"v_lshrrev_b32 v{V_T}, 6, v0")
    a(f"v_and_b32 v{V_LANE}, 63, v0")
    a("s_nop 0")
    a(f"v_readfirstlane_b32 s{S_WAVE}, v{V_T}")
    a(f"s_and_b32 s{S_QB}, s{S_WAVE}, 3")
    a(f"s_lshr_b32 s{S_G}, s{S_WAVE}, 2")
    a(f"s_mov_b32 s{S_C}, {f32hex(SCALE_LOG2E)}")
    a(f"s_lshl_b32 s{S_KVOFF}, s2, 18")
    a(f"s_lshl_b32 s{S_LDSW}, s{S_WAVE}, 11")
    a(f"s_add_u32 s{S_KVOFF}, s{S_KVOFF}, s{S_LDSW}")
    a(f"v_lshrrev_b32 v{V_T}, 4, v{V_LANE}")
    a(f"v_and_b32 v{V_T+1}, 15, v{V_LANE}")
    a(f"s_and_b32 s{S_T0}, s{S_WAVE}, 1")
    a(f"s_lshl_b32 s{S_T0}, s{S_T0}, 3")
    a(f"v_add_u32 v{V_T+2}, s{S_T0}, v{V_T}")
    a(f"v_xor_b32 v{V_T+3}, v{V_T+1}, v{V_T+2}")
    a(f"v_lshlrev_b32 v{V_T+3}, 4, v{V_T+3}")
    a(f"v_lshl_add_u32 v{V_KOFF0}, v{V_T}, 8, v{V_T+3}")
    a(f"v_add_u32 v{V_T+2}, 4, v{V_T+2}")
    a(f"v_xor_b32 v{V_T+3}, v{V_T+1}, v{V_T+2}")
    a(f"v_lshlrev_b32 v{V_T+3}, 4, v{V_T+3}")
    a(f"v_lshl_add_u32 v{V_KOFF1}, v{V_T}, 8, v{V_T+3}")
    a(f"v_lshlrev_b32 v{V_T+2}, 2, v{V_T}")
    a(f"v_xor_b32 v{V_T+3}, v{V_T+1}, v{V_T+2}")
    a(f"v_lshlrev_b32 v{V_T+3}, 4, v{V_T+3}")
    a(f"v_lshl_add_u32 v{V_VOFF}, v{V_T}, 8, v{V_T+3}")

    def issue_dma(slot):
        base = slot * SLOT
        for part, srd, voffs in ((0, SRD_K, (V_KOFF0, V_KOFF1)), (16384, SRD_V, (V_VOFF, V_VOFF))):
            for j in range(2):
                a(f"s_add_u32 s{S_T0}, s{S_LDSW}, {base + part + j*1024}")
                a(f"s_mov_b32 m0, s{S_T0}")
                a(f"s_add_u32 s{S_T1}, s{S_KVOFF}, {j*1024}")
                a(f"buffer_load_dwordx4 v{voffs[j]}, s[{srd}:{srd+3}], s{S_T1} offen lds")
        a(f"s_add_u32 s{S_KVOFF}, s{S_KVOFF}, {64*256}")

    for c in range(DIST):
        issue_dma(c % NS)

    a(f"v_and_b32 v{V_T}, 31, v{V_LANE}")
    a(f"v_lshlrev_b32 v{V_T}, 13, v{V_T}")
    a(f"v_lshrrev_b32 v{V_T+1}, 5, v{V_LANE}")
    a(f"v_lshl_add_u32 v{V_T}, v{V_T+1}, 4, v{V_T}")
    a(f"s_lshr_b32 s{S_T0}, s2, 5")
    a(f"s_lshl_b32 s{S_T0}, s{S_T0}, 7")
    a(f"s_lshl_b32 s{S_T1}, s{S_QB}, 5")
    a(f"s_add_u32 s{S_T0}, s{S_T0}, s{S_T1}")
    a(f"s_lshl_b32 s{S_T0}, s{S_T0}, 13")
    a(f"s_and_b32 s{S_T1}, s2, 31")
    a(f"s_lshl_b32 s{S_T1}, s{S_T1}, 8")
    a(f"s_add_u32 s{S_QOFF}, s{S_T0}, s{S_T1}")
    for ks in range(8):
        a(f"buffer_load_dwordx4 v[{V_Q+4*ks}:{V_Q+4*ks+3}], v{V_T}, s[{SRD_Q}:{SRD_Q+3}], s{S_QOFF} offen offset:{32*ks}")

    a(f"s_lshl_b32 s{S_T0}, s{S_G}, 5")
    a(f"v_and_b32 v{V_T}, 31, v{V_LANE}")
    a(f"v_add_u32 v{V_T}, s{S_T0}, v{V_T}")
    a(f"v_lshlrev_b32 v{V_T}, 8, v{V_T}")
    a(f"v_lshrrev_b32 v{V_T+1}, 5, v{V_LANE}")
    a(f"v_and_b32 v{V_T+2}, 15, v{V_LANE}")
    a(f"v_xor_b32 v{V_T+1}, v{V_T+1}, v{V_T+2}")
    for ks in range(8):
        a(f"v_xor_b32 v{V_T+2}, {2*ks}, v{V_T+1}")
        a(f"v_lshl_add_u32 v{V_KAD+ks}, v{V_T+2}, 4, v{V_T}")
    a(f"v_lshrrev_b32 v{V_T}, 5, v{V_LANE}")
    a(f"v_lshlrev_b32 v{V_T}, 2, v{V_T}")
    a(f"v_lshrrev_b32 v{V_T+1}, 2, v{V_LANE}")
    a(f"v_and_b32 v{V_T+1}, 3, v{V_T+1}")
    a(f"v_add_u32 v{V_T}, v{V_T}, v{V_T+1}")
    a(f"v_add_u32 v{V_T}, s{S_T0}, v{V_T}")
    a(f"v_lshlrev_b32 v{V_T}, 8, v{V_T}")
    a(f"v_add_u32 v{V_T}, 16384, v{V_T}")
    a(f"v_and_b32 v{V_T+2}, 1, v{V_LANE}")
    a(f"v_lshl_add_u32 v{V_T}, v{V_T+2}, 3, v{V_T}")
    a(f"v_lshlrev_b32 v{V_T+1}, 2, v{V_T+1}")
    a(f"v_lshrrev_b32 v{V_T+2}, 4, v{V_LANE}")
    a(f"v_and_b32 v{V_T+2}, 1, v{V_T+2}")
    a(f"v_lshlrev_b32 v{V_T+2}, 1, v{V_T+2}")
    a(f"v_lshrrev_b32 v{V_T+3}, 1, v{V_LANE}")
    a(f"v_and_b32 v{V_T+3}, 1, v{V_T+3}")
    a(f"v_add_u32 v{V_T+2}, v{V_T+2}, v{V_T+3}")
    for db in range(4):
        a(f"v_add_u32 v{V_T+3}, {4*db}, v{V_T+2}")
        a(f"v_xor_b32 v{V_T+3}, v{V_T+3}, v{V_T+1}")
        a(f"v_lshl_add_u32 v{V_VAD+db}, v{V_T+3}, 4, v{V_T}")
    a(f"v_mov_b32 v{V_M}, 0xff800000")
    a(f"v_mov_b32 v{V_L}, 0")
    for r in range(64):
        a(f"v_mov_b32 v{V_O+r}, 0")

    def body(slot, issue, vm_wait):
        a(f"s_waitcnt vmcnt({vm_wait})")
        a("s_barrier")
        if issue:
            issue_dma((slot + DIST) % NS)
        for ks in range(8):
            a(f"v_add_u32 v{V_KC+ks}, {slot*SLOT}, v{V_KAD+ks}")
        for ks in range(8):
            a(f"ds_read_b128 v[{V_KF+4*ks}:{V_KF+4*ks+3}], v{V_KC+ks}")
        for db in range(4):
            a(f"v_add_u32 v{V_VC+db}, {slot*SLOT}, v{V_VAD+db}")
        for ks in range(8):
            a(f"s_waitcnt lgkmcnt({7-ks})")
            c = "0" if ks == 0 else f"v[{V_S}:{V_S+15}]"
            a(f"v_mfma_f32_32x32x16_bf16 v[{V_S}:{V_S+15}], v[{V_KF+4*ks}:{V_KF+4*ks+3}], v[{V_Q+4*ks}:{V_Q+4*ks+3}], {c}")
        for t in range(2):
            for db in range(4):
                r = V_VF + (t * 4 + db) * 4
                for u in range(2):
                    a(f"ds_read_b64_tr_b16 v[{r+2*u}:{r+2*u+1}], v{V_VC+db} offset:{(16*t+8*u)*256}")
        a("s_nop 7"); a("s_nop 3")
        S = V_S; T = V_T
        a(f"v_max3_f32 v{T}, v{S}, v{S+1}, v{S+2}")
        a(f"v_max3_f32 v{T+1}, v{S+3}, v{S+4}, v{S+5}")
        a(f"v_max3_f32 v{T+2}, v{S+6}, v{S+7}, v{S+8}")
        a(f"v_max3_f32 v{T+3}, v{S+9}, v{S+10}, v{S+11}")
        a(f"v_max3_f32 v{T+4}, v{S+12}, v{S+13}, v{S+14}")
        a(f"v_max3_f32 v{T}, v{T}, v{T+1}, v{T+2}")
        a(f"v_max3_f32 v{T+3}, v{T+3}, v{T+4}, v{S+15}")
        a(f"v_max_f32 v{T}, v{T}, v{T+3}")
        a(f"v_mov_b32 v{T+1}, v{T}")
        a("s_nop 1")
        a(f"v_permlane32_swap_b32 v{T}, v{T+1}")
        a(f"v_max_f32 v{T}, v{T}, v{T+1}")
        a(f"v_mul_f32 v{T}, s{S_C}, v{T}")
        a(f"v_max_f32 v{T+1}, v{V_M}, v{T}")
        a(f"v_sub_f32 v{T+2}, v{V_M}, v{T+1}")
        a(f"v_exp_f32 v{V_ALPHA}, v{T+2}")
        a(f"v_mov_b32 v{V_M}, v{T+1}")
        for i in range(16):
            a(f"v_fma_f32 v{S+i}, v{S+i}, s{S_C}, -v{T+1}")
        for i in range(16):
            a(f"v_exp_f32 v{S+i}, v{S+i}")
        a(f"v_mul_f32 v{V_L}, v{V_L}, v{V_ALPHA}")
        for i in range(0, 16, 2):
            a(f"v_add_f32 v{T+2}, v{S+i}, v{S+i+1}")
            a(f"v_add_f32 v{V_L}, v{V_L}, v{T+2}")
        for i in range(8):
            a(f"v_cvt_pk_bf16_f32 v{V_P+i}, v{S+2*i}, v{S+2*i+1}")
        for r in range(64):
            a(f"v_mul_f32 v{V_O+r}, v{V_O+r}, v{V_ALPHA}")
        a("s_nop 1")
        n = 0
        for t in range(2):
            for db in range(4):
                r = V_VF + (t * 4 + db) * 4
                a(f"s_waitcnt lgkmcnt({14 - 2*n})"); n += 1
                o = V_O + 16 * db
                a(f"v_mfma_f32_32x32x16_bf16 v[{o}:{o+15}], v[{r}:{r+3}], v[{V_P+4*t}:{V_P+4*t+3}], v[{o}:{o+15}]")

    NDMA = 4
    a("s_waitcnt vmcnt(0)")
    n_issue = NSTEP - DIST
    ngroups = n_issue // NS
    a(f"s_mov_b32 s{S_CNT}, {ngroups}")
    a.label(f"{name}_loop")
    for s in range(NS):
        body(s, True, NDMA * (DIST - 1))
    a(f"s_sub_u32 s{S_CNT}, s{S_CNT}, 1")
    a(f"s_cmp_lg_u32 s{S_CNT}, 0")
    a(f"s_cbranch_scc1 {name}_loop")
    for c in range(ngroups * NS, NSTEP):
        body(c % NS, c + DIST < NSTEP, NDMA * min(DIST - 1, NSTEP - 1 - c))

    a("s_nop 7"); a("s_nop 7")
    a(f"v_mov_b32 v{V_T}, v{V_L}")
    a("s_nop 1")
    a(f"v_permlane32_swap_b32 v{V_L}, v{V_T}")
    a(f"v_add_f32 v{V_L}, v{V_L}, v{V_T}")
    a("s_barrier")
    a(f"v_lshlrev_b32 v{V_T}, 2, v{V_LANE}")
    a(f"s_mul_i32 s{S_T0}, s{S_QB}, {66*256}")
    a(f"v_add_u32 v{V_T}, s{S_T0}, v{V_T}")
    a(f"s_cmp_eq_u32 s{S_G}, 0")
    a(f"s_cbranch_scc1 {name}_g0")
    for r in range(64):
        a(f"ds_write_b32 v{V_T}, v{V_O+r} offset:{256*r}")
    a(f"ds_write_b32 v{V_T}, v{V_M} offset:{256*64}")
    a(f"ds_write_b32 v{V_T}, v{V_L} offset:{256*65}")
    a("s_waitcnt lgkmcnt(0)")
    a("s_barrier")
    a(f"s_branch {name}_done")
    a.label(f"{name}_g0")
    a("s_barrier")
    M1, L1 = V_T + 1, V_T + 2
    a(f"ds_read_b32 v{M1}, v{V_T} offset:{256*64}")
    a(f"ds_read_b32 v{L1}, v{V_T} offset:{256*65}")
    a("s_waitcnt lgkmcnt(0)")
    MN, A0, A1 = V_T + 3, V_T + 4, V_T + 5
    a(f"v_max_f32 v{MN}, v{V_M}, v{M1}")
    a(f"v_sub_f32 v{A0}, v{V_M}, v{MN}")
    a(f"v_sub_f32 v{A1}, v{M1}, v{MN}")
    a(f"v_exp_f32 v{A0}, v{A0}")
    a(f"v_exp_f32 v{A1}, v{A1}")
    a("s_nop 0")
    a(f"v_mul_f32 v{V_L}, v{V_L}, v{A0}")
    a(f"v_fma_f32 v{V_L}, v{L1}, v{A1}, v{V_L}")
    a(f"v_rcp_f32 v{V_L}, v{V_L}")
    a("s_nop 0")
    a(f"v_mul_f32 v{A0}, v{A0}, v{V_L}")
    a(f"v_mul_f32 v{A1}, v{A1}, v{V_L}")
    for blk in range(4):
        for r in range(16):
            a(f"ds_read_b32 v{V_KF+r}, v{V_T} offset:{256*(16*blk+r)}")
        a("s_waitcnt lgkmcnt(0)")
        for r in range(16):
            o = V_O + 16 * blk + r
            a(f"v_mul_f32 v{o}, v{o}, v{A0}")
            a(f"v_fma_f32 v{o}, v{V_KF+r}, v{A1}, v{o}")
    a(f"v_and_b32 v{V_T+6}, 31, v{V_LANE}")
    a(f"v_lshlrev_b32 v{V_T+6}, 13, v{V_T+6}")
    a(f"v_lshrrev_b32 v{V_T+7}, 5, v{V_LANE}")
    a(f"v_lshl_add_u32 v{V_T+6}, v{V_T+7}, 3, v{V_T+6}")
    k = 0
    for db in range(4):
        for gg in range(4):
            o = V_O + 16 * db + 4 * gg
            t = V_VF + 2 * (k % 16); k += 1
            a(f"v_cvt_pk_bf16_f32 v{t}, v{o}, v{o+1}")
            a(f"v_cvt_pk_bf16_f32 v{t+1}, v{o+2}, v{o+3}")
            a(f"buffer_store_dwordx2 v[{t}:{t+1}], v{V_T+6}, s[{SRD_O}:{SRD_O+3}], s{S_QOFF} offen offset:{64*db+16*gg}")
    a.label(f"{name}_done")
    a("s_endpgm")
    return a.text(), V_END, NS * SLOT, 256, None
```

```python
class Asm:
    def __init__(self):
        self.lines = []
    def __call__(self, s):
        self.lines.append("    " + s)
    def label(self, l):
        self.lines.append(l + ":")
    def c(self, s):
        self.lines.append("    ; " + s)
    def text(self):
        return "\n".join(self.lines) + "\n"

KA_X, KA_K, KA_V, KA_WQ, KA_WO, KA_OUT, KA_DBG, KA_WS = 0, 8, 16, 24, 32, 40, 48, 56
WS_BYTES = 268435456

def srd_from_karg(a, sd, stmp, karg_off, nbytes, base_add=0):
    a(f"s_load_dwordx2 s[{sd}:{sd+1}], s[0:1], {karg_off}")
    a("s_waitcnt lgkmcnt(0)")
    if base_add:
        a(f"s_add_u32 s{sd}, s{sd}, {base_add}")
        a(f"s_addc_u32 s{sd+1}, s{sd+1}, 0")
    a(f"s_and_b32 s{sd+1}, s{sd+1}, 0xffff")
    a(f"s_mov_b32 s{sd+2}, {nbytes}")
    a(f"s_mov_b32 s{sd+3}, 0x00020000")

def kernel_header(name):
    return f""".text
.globl {name}
.p2align 8
.type {name},@function
{name}:
"""

def kernel_footer(name, vgprs, sgprs=102, accum=None):
    if accum is None:
        accum = (vgprs + 3) // 4 * 4
    return f""".section .rodata,"a"
.p2align 6
.amdhsa_kernel {name}
  .amdhsa_next_free_vgpr {vgprs}
  .amdhsa_next_free_sgpr {sgprs}
  .amdhsa_accum_offset {accum}
  .amdhsa_group_segment_fixed_size 0
  .amdhsa_kernarg_size 64
  .amdhsa_user_sgpr_count 2
  .amdhsa_user_sgpr_kernarg_segment_ptr 1
  .amdhsa_system_sgpr_workgroup_id_x 1
.end_amdhsa_kernel
"""
```

```python
from gen_common import *

def gen_gemm(name, M, N, K, TM, TN, WNn, a_src, b_src, c_dst, lda, ldb, ldc, stages, dist):
    KC = 64
    NC = K // KC
    assert K % KC == 0
    WMn = 4 // WNn
    WM, WN = TM // WMn, TN // WNn
    MB, NB = WM // 32, WN // 32
    A_BYTES = TM * KC * 2
    B_BYTES = KC * TN * 2
    ST_BYTES = A_BYTES + B_BYTES
    ROWB = TN * 2
    CPR = ROWB // 16
    assert CPR in (8, 16)
    nA = A_BYTES // 1024
    nB = B_BYTES // 1024
    rowsB = 1024 // ROWB
    assert nA % 4 == 0 and nB % 4 == 0
    nAw, nBw = nA // 4, nB // 4
    NDMA = nAw + nBw
    NTM, NTN = M // TM, N // TN
    ntiles = NTM * NTN
    lds_total = stages * ST_BYTES

    a = Asm()
    SRD_A, SRD_B, SRD_C = 4, 8, 12
    S_M0T, S_N0T, S_WAVE = 16, 17, 18
    S_OFFA, S_OFFB = 20, 21
    S_T0, S_T1, S_T2 = 22, 23, 24
    S_CNT = 25
    S_LDSA, S_LDSB = 26, 27
    S_COFF = 28
    V_LANE = 1
    V_OFFA0, V_OFFA1, V_OFFB = 2, 3, 4
    V_AADDR = 5
    V_BADDR = 9
    V_T = 12
    V_ACUR = 16
    V_BCUR = 20
    V_OFFC = 24
    V_AF = 28
    V_BF = V_AF + 2 * MB * 4
    V_ACC = ((V_BF + 2 * NB * 4 + 3) // 4) * 4
    nacc = MB * NB * 16
    V_END = V_ACC + nacc

    a(f"s_cmp_ge_u32 s2, {ntiles}")
    a(f"s_cbranch_scc1 {name}_done")
    srd_from_karg(a, SRD_A, S_T0, a_src[0], a_src[2], a_src[1])
    srd_from_karg(a, SRD_B, S_T0, b_src[0], b_src[2], b_src[1])
    srd_from_karg(a, SRD_C, S_T0, c_dst[0], c_dst[2], c_dst[1])
    assert NTM & (NTM - 1) == 0
    a(f"s_and_b32 s{S_M0T}, s2, {NTM-1}")
    a(f"s_lshr_b32 s{S_N0T}, s2, {NTM.bit_length()-1}")
    a(f"s_mul_i32 s{S_M0T}, s{S_M0T}, {TM}")
    a(f"s_mul_i32 s{S_N0T}, s{S_N0T}, {TN}")
    a(f"v_lshrrev_b32 v{V_T}, 6, v0")
    a(f"v_and_b32 v{V_LANE}, 63, v0")
    a("s_nop 0")
    a(f"v_readfirstlane_b32 s{S_WAVE}, v{V_T}")
    a(f"v_lshrrev_b32 v{V_T}, 3, v{V_LANE}")
    a(f"s_mov_b32 s{S_T0}, {lda}")
    a(f"v_mul_lo_u32 v{V_OFFA0}, v{V_T}, s{S_T0}")
    a(f"v_and_b32 v{V_T}, 7, v{V_LANE}")
    a(f"v_lshrrev_b32 v{V_T+1}, 4, v{V_LANE}")
    a(f"v_xor_b32 v{V_T}, v{V_T}, v{V_T+1}")
    a(f"v_lshlrev_b32 v{V_T+1}, 4, v{V_T}")
    a(f"v_add_u32 v{V_OFFA1}, v{V_OFFA0}, v{V_T+1}")
    a(f"v_xor_b32 v{V_T+1}, 64, v{V_T+1}")
    a(f"v_add_u32 v{V_T+2}, v{V_OFFA0}, v{V_T+1}")
    a(f"v_mov_b32 v{V_OFFA0}, v{V_OFFA1}")
    a(f"v_mov_b32 v{V_OFFA1}, v{V_T+2}")
    if CPR == 16:
        a(f"v_lshrrev_b32 v{V_T}, 4, v{V_LANE}")
        a(f"v_lshlrev_b32 v{V_T+1}, 2, v{V_T}")
        a(f"v_and_b32 v{V_T+2}, 15, v{V_LANE}")
        a(f"v_xor_b32 v{V_T+1}, v{V_T+1}, v{V_T+2}")
    else:
        a(f"v_lshrrev_b32 v{V_T}, 3, v{V_LANE}")
        a(f"v_lshrrev_b32 v{V_T+1}, 4, v{V_LANE}")
        a(f"v_and_b32 v{V_T+1}, 1, v{V_T+1}")
        a(f"v_lshlrev_b32 v{V_T+1}, 2, v{V_T+1}")
        a(f"v_and_b32 v{V_T+2}, 7, v{V_LANE}")
        a(f"v_xor_b32 v{V_T+1}, v{V_T+1}, v{V_T+2}")
    a(f"s_mov_b32 s{S_T0}, {ldb}")
    a(f"v_mul_lo_u32 v{V_OFFB}, v{V_T}, s{S_T0}")
    a(f"v_lshlrev_b32 v{V_T+1}, 4, v{V_T+1}")
    a(f"v_add_u32 v{V_OFFB}, v{V_OFFB}, v{V_T+1}")
    a(f"s_mul_i32 s{S_T0}, s{S_WAVE}, {8*nAw}")
    a(f"s_add_u32 s{S_T0}, s{S_T0}, s{S_M0T}")
    a(f"s_mul_i32 s{S_OFFA}, s{S_T0}, {lda}")
    a(f"s_mul_i32 s{S_OFFB}, s{S_WAVE}, {rowsB*nBw*ldb}")
    a(f"s_lshl_b32 s{S_T0}, s{S_N0T}, 1")
    a(f"s_add_u32 s{S_OFFB}, s{S_OFFB}, s{S_T0}")
    a(f"s_mul_i32 s{S_LDSA}, s{S_WAVE}, {nAw*1024}")
    a(f"s_mul_i32 s{S_LDSB}, s{S_WAVE}, {nBw*1024}")
    a(f"s_add_u32 s{S_LDSB}, s{S_LDSB}, {A_BYTES}")

    def issue_dma(stage):
        for j in range(nAw):
            a(f"s_add_u32 s{S_T0}, s{S_LDSA}, {stage*ST_BYTES + j*1024}")
            a(f"s_mov_b32 m0, s{S_T0}")
            a(f"s_add_u32 s{S_T1}, s{S_OFFA}, {8*j*lda}")
            if nAw % 2 == 0:
                vo = V_OFFA0 if j % 2 == 0 else V_OFFA1
                a(f"buffer_load_dwordx4 v{vo}, s[{SRD_A}:{SRD_A+3}], s{S_T1} offen lds")
            else:
                raise NotImplementedError
        for j in range(nBw):
            a(f"s_add_u32 s{S_T0}, s{S_LDSB}, {stage*ST_BYTES + j*1024}")
            a(f"s_mov_b32 m0, s{S_T0}")
            a(f"s_add_u32 s{S_T1}, s{S_OFFB}, {rowsB*j*ldb}")
            a(f"buffer_load_dwordx4 v{V_OFFB}, s[{SRD_B}:{SRD_B+3}], s{S_T1} offen lds")
        a(f"s_add_u32 s{S_OFFA}, s{S_OFFA}, {KC*2}")
        a(f"s_add_u32 s{S_OFFB}, s{S_OFFB}, {KC*ldb}")

    lw = WNn.bit_length() - 1
    a(f"s_lshr_b32 s{S_T0}, s{S_WAVE}, {lw}")
    a(f"s_and_b32 s{S_T1}, s{S_WAVE}, {WNn-1}")
    a(f"s_mul_i32 s{S_T0}, s{S_T0}, {WM}")
    a(f"s_mul_i32 s{S_T1}, s{S_T1}, {WN}")
    a(f"v_and_b32 v{V_T}, 31, v{V_LANE}")
    a(f"v_add_u32 v{V_T}, s{S_T0}, v{V_T}")
    a(f"v_lshlrev_b32 v{V_T}, 7, v{V_T}")
    a(f"v_lshrrev_b32 v{V_T+1}, 5, v{V_LANE}")
    a(f"v_lshrrev_b32 v{V_T+2}, 1, v{V_LANE}")
    a(f"v_and_b32 v{V_T+2}, 7, v{V_T+2}")
    a(f"v_xor_b32 v{V_T+1}, v{V_T+1}, v{V_T+2}")
    for ks in range(4):
        a(f"v_xor_b32 v{V_T+2}, {2*ks}, v{V_T+1}")
        a(f"v_lshl_add_u32 v{V_AADDR+ks}, v{V_T+2}, 4, v{V_T}")
    a(f"v_lshrrev_b32 v{V_T}, 5, v{V_LANE}")
    a(f"v_lshlrev_b32 v{V_T}, 3, v{V_T}")
    a(f"v_lshrrev_b32 v{V_T+1}, 2, v{V_LANE}")
    a(f"v_and_b32 v{V_T+1}, 3, v{V_T+1}")
    a(f"v_add_u32 v{V_T}, v{V_T}, v{V_T+1}")
    a(f"v_mul_u32_u24 v{V_T}, {ROWB}, v{V_T}")
    a(f"v_add_u32 v{V_T}, {A_BYTES}, v{V_T}")
    a(f"v_and_b32 v{V_T+2}, 1, v{V_LANE}")
    a(f"v_lshl_add_u32 v{V_T}, v{V_T+2}, 3, v{V_T}")
    if CPR == 16:
        a(f"v_lshlrev_b32 v{V_T+1}, 2, v{V_T+1}")
    else:
        a(f"v_lshrrev_b32 v{V_T+1}, 1, v{V_T+1}")
        a(f"v_lshlrev_b32 v{V_T+1}, 2, v{V_T+1}")
    a(f"v_lshrrev_b32 v{V_T+2}, 4, v{V_LANE}")
    a(f"v_and_b32 v{V_T+2}, 1, v{V_T+2}")
    a(f"v_lshlrev_b32 v{V_T+2}, 1, v{V_T+2}")
    a(f"v_lshrrev_b32 v{V_T+3}, 1, v{V_LANE}")
    a(f"v_and_b32 v{V_T+3}, 1, v{V_T+3}")
    a(f"v_add_u32 v{V_T+2}, v{V_T+2}, v{V_T+3}")
    a(f"s_lshr_b32 s{S_T1}, s{S_T1}, 3")
    a(f"v_add_u32 v{V_T+2}, s{S_T1}, v{V_T+2}")
    for nb in range(NB):
        a(f"v_add_u32 v{V_T+3}, {4*nb}, v{V_T+2}")
        a(f"v_xor_b32 v{V_T+3}, v{V_T+3}, v{V_T+1}")
        a(f"v_lshl_add_u32 v{V_BADDR+nb}, v{V_T+3}, 4, v{V_T}")
    for r in range(nacc):
        a(f"v_mov_b32 v{V_ACC+r}, 0")

    for c in range(min(dist, NC)):
        issue_dma(c % stages)

    def body(stage, issue, vm_wait):
        a(f"s_waitcnt vmcnt({vm_wait})")
        a("s_barrier")
        if issue:
            issue_dma((stage + dist) % stages)
        for ks in range(4):
            a(f"v_add_u32 v{V_ACUR+ks}, {stage*ST_BYTES}, v{V_AADDR+ks}")
        for nb in range(NB):
            a(f"v_add_u32 v{V_BCUR+nb}, {stage*ST_BYTES}, v{V_BADDR+nb}")
        for ks in range(4):
            st = ks % 2
            for mb in range(MB):
                r = V_AF + (st * MB + mb) * 4
                a(f"ds_read_b128 v[{r}:{r+3}], v{V_ACUR+ks} offset:{mb*4096}")
            for nb in range(NB):
                r = V_BF + (st * NB + nb) * 4
                for u in range(2):
                    a(f"ds_read_b64_tr_b16 v[{r+2*u}:{r+2*u+1}], v{V_BCUR+nb} offset:{(16*ks+4*u)*ROWB}")
            a("s_waitcnt lgkmcnt(0)")
            for nb in range(NB):
                for mb in range(MB):
                    acc = V_ACC + (nb * MB + mb) * 16
                    ra = V_BF + (st * NB + nb) * 4
                    rb = V_AF + (st * MB + mb) * 4
                    a(f"v_mfma_f32_32x32x16_bf16 v[{acc}:{acc+15}], v[{ra}:{ra+3}], v[{rb}:{rb+3}], v[{acc}:{acc+15}]")

    def vmw(c):
        return NDMA * min(dist - 1, NC - 1 - c)
    if NC <= 12:
        for c in range(NC):
            body(c % stages, c + dist < NC, vmw(c))
    else:
        n_issue = NC - dist
        ngroups = n_issue // stages
        a(f"s_mov_b32 s{S_CNT}, {ngroups}")
        a.label(f"{name}_loop")
        for s in range(stages):
            body(s, True, NDMA * (dist - 1))
        a(f"s_sub_u32 s{S_CNT}, s{S_CNT}, 1")
        a(f"s_cmp_lg_u32 s{S_CNT}, 0")
        a(f"s_cbranch_scc1 {name}_loop")
        for c in range(ngroups * stages, NC):
            body(c % stages, c + dist < NC, vmw(c))

    a("s_nop 7"); a("s_nop 7")
    a(f"s_lshr_b32 s{S_T0}, s{S_WAVE}, {lw}")
    a(f"s_and_b32 s{S_T1}, s{S_WAVE}, {WNn-1}")
    a(f"s_mul_i32 s{S_T0}, s{S_T0}, {WM}")
    a(f"s_mul_i32 s{S_T1}, s{S_T1}, {WN*2}")
    a(f"v_and_b32 v{V_T}, 31, v{V_LANE}")
    a(f"v_add_u32 v{V_T}, s{S_T0}, v{V_T}")
    a(f"s_mov_b32 s{S_T2}, {ldc}")
    a(f"v_mul_lo_u32 v{V_OFFC}, v{V_T}, s{S_T2}")
    a(f"v_lshrrev_b32 v{V_T}, 5, v{V_LANE}")
    a(f"v_lshl_add_u32 v{V_OFFC}, v{V_T}, 3, v{V_OFFC}")
    a(f"v_add_u32 v{V_OFFC}, s{S_T1}, v{V_OFFC}")
    for mb in range(MB):
        a(f"s_add_u32 s{S_T0}, s{S_M0T}, {32*mb}")
        a(f"s_mul_i32 s{S_COFF+mb}, s{S_T0}, {ldc}")
        a(f"s_lshl_b32 s{S_T0}, s{S_N0T}, 1")
        a(f"s_add_u32 s{S_COFF+mb}, s{S_COFF+mb}, s{S_T0}")
    k = 0
    for nb in range(NB):
        for mb in range(MB):
            acc = V_ACC + (nb * MB + mb) * 16
            for g in range(4):
                t = V_AF + 2 * (k % 8); k += 1
                a(f"v_cvt_pk_bf16_f32 v{t}, v{acc+4*g}, v{acc+4*g+1}")
                a(f"v_cvt_pk_bf16_f32 v{t+1}, v{acc+4*g+2}, v{acc+4*g+3}")
                a(f"buffer_store_dwordx2 v[{t}:{t+1}], v{V_OFFC}, s[{SRD_C}:{SRD_C+3}], s{S_COFF+mb} offen offset:{(nb*32+8*g)*2}")
    a.label(f"{name}_done")
    a("s_endpgm")
    return a.text(), V_END, lds_total, ntiles
```

```python
import sys
sys.path.insert(0, "dev")
from gen_common import *
from gen_gemm import gen_gemm

HEADER = """; Kernarg layout for this problem (64 bytes, ptrs only, base s[0:1]):
"""
Q_OFF, O_OFF = 0, 8 * 1024 * 1024

def build(which):
    launches = []
    code = []
    foot = []
    if "q" in which:
        n = "qproj_kernel"
        body, v, lds, nt = gen_gemm(n, 1024, 4096, 576, 128, 128, 2,
                                    (KA_X, 0, 1024 * 576 * 2), (KA_WQ, 0, 576 * 4096 * 2), (KA_WS, Q_OFF, 8 * 1024 * 1024),
                                    576 * 2, 4096 * 2, 4096 * 2, 5)
        launches.append(f"; @launch kernel={n} grid=({nt},1,1) block=(256,1,1) lds={lds}")
        code.append(kernel_header(n) + body); foot.append(kernel_footer(n, v))
    if "a" in which:
        from gen_attn import gen_attn
        n = "attn_kernel"
        body, v, lds, nt, acc = gen_attn(n, nocompute=('C' in which), nodma=('D' in which), nt=('N' in which), rot=('R' in which))
        launches.append(f"; @launch kernel={n} grid=({nt},1,1) block=(512,1,1) lds={lds}")
        code.append(kernel_header(n) + body); foot.append(kernel_footer(n, v, accum=acc))
    if "o" in which:
        n = "oproj_kernel"
        body, v, lds, nt = gen_gemm(n, 1024, 576, 4096, 64, 64, 2,
                                    (KA_WS, O_OFF, 8 * 1024 * 1024), (KA_WO, 0, 4096 * 576 * 2), (KA_OUT, 0, 1024 * 576 * 2),
                                    4096 * 2, 576 * 2, 576 * 2, 6)
        launches.append(f"; @launch kernel={n} grid=({nt},1,1) block=(256,1,1) lds={lds}")
        code.append(kernel_header(n) + body); foot.append(kernel_footer(n, v))
    return HEADER + "\n".join(launches) + '\n.amdgcn_target "amdgcn-amd-amdhsa--gfx950"\n' + "".join(code) + "".join(foot)

if __name__ == "__main__":
    which = sys.argv[1] if len(sys.argv) > 1 else "qao"
    out = sys.argv[2] if len(sys.argv) > 2 else "k.s"
    open(out, "w").write(build(which))
    print("wrote", out)
```

```python
from gen_common import *

SCALE_LOG2E = (128 ** -0.5) * 1.4426950408889634

def f32hex(x):
    import struct
    return "0x%08x" % struct.unpack("<I", struct.pack("<f", x))[0]

def gen_attn(name, nocompute=False, nodma=False, nt=False, rot=False):
    NS, DIST = 4, 3
    SLOT = 32768
    NQ, NKV = 9, 16
    NSEQ = NQ + NKV
    QX = 131072
    a = Asm()
    SRD_K, SRD_V, SRD_X, SRD_W, SRD_O = 4, 8, 12, 16, 36
    S_WAVE, S_QB, S_G = 21, 22, 23
    S_KVOFF = 24
    S_T0, S_T1, S_T2 = 25, 26, 27
    S_C = 28
    S_LDSW = 30
    S_OOFF = 31
    S_THR = 32
    S_XOFF, S_WOFF = 33, 34
    V_LANE = 1
    V_KOFF0, V_KOFF1, V_VOFF = 2, 3, 4
    V_KAD = 5
    V_VAD = 13
    V_KC = 17
    V_VC = 25
    V_M, V_L, V_ALPHA = 29, 30, 31
    V_T = 32
    V_P = 40
    V_Q = 48
    V_S = 80
    V_KF = 96
    V_VF = 128
    V_O = 160
    V_XOFF0, V_XOFF1, V_WOFF = 224, 225, 226
    V_XAD = 227
    V_END = 232

    a(f"s_cmp_ge_u32 s2, 256")
    a(f"s_cbranch_scc1 {name}_done")
    a(f"s_load_dwordx2 s[{SRD_K}:{SRD_K+1}], s[0:1], {KA_K}")
    a(f"s_load_dwordx2 s[{SRD_V}:{SRD_V+1}], s[0:1], {KA_V}")
    a(f"s_load_dwordx2 s[{SRD_X}:{SRD_X+1}], s[0:1], {KA_X}")
    a(f"s_load_dwordx2 s[{SRD_W}:{SRD_W+1}], s[0:1], {KA_WQ}")
    a(f"s_load_dwordx2 s[{SRD_O}:{SRD_O+1}], s[0:1], {KA_WS}")
    a(f"v_lshrrev_b32 v{V_T}, 6, v0")
    a(f"v_and_b32 v{V_LANE}, 63, v0")
    a("s_nop 0")
    a(f"v_readfirstlane_b32 s{S_WAVE}, v{V_T}")
    a("s_waitcnt lgkmcnt(0)")
    for sd, nbytes, add in ((SRD_K, 8*32*1024*128*2, 0), (SRD_V, 8*32*1024*128*2, 0), (SRD_X, 1024*576*2, 0),
                            (SRD_W, 576*4096*2, 0), (SRD_O, 8*1024*1024, 8*1024*1024)):
        if add:
            a(f"s_add_u32 s{sd}, s{sd}, {add}")
            a(f"s_addc_u32 s{sd+1}, s{sd+1}, 0")
        a(f"s_and_b32 s{sd+1}, s{sd+1}, 0xffff")
        a(f"s_mov_b32 s{sd+2}, {nbytes}")
        a(f"s_mov_b32 s{sd+3}, 0x00020000")
    a(f"s_and_b32 s{S_QB}, s{S_WAVE}, 3")
    a(f"s_lshr_b32 s{S_G}, s{S_WAVE}, 2")
    a(f"s_mov_b32 s{S_C}, {f32hex(SCALE_LOG2E)}")
    a(f"s_mov_b32 s{S_THR}, 0x41000000")
    a(f"s_lshl_b32 s{S_LDSW}, s{S_WAVE}, 11")
    a(f"s_lshl_b32 s{S_KVOFF}, s2, 18")
    a(f"s_add_u32 s{S_KVOFF}, s{S_KVOFF}, s{S_LDSW}")
    a(f"s_lshr_b32 s{S_T0}, s2, 5")
    a(f"s_lshl_b32 s{S_T0}, s{S_T0}, 7")
    a(f"s_lshl_b32 s{S_T1}, s{S_WAVE}, 4")
    a(f"s_add_u32 s{S_T0}, s{S_T0}, s{S_T1}")
    a(f"s_mul_i32 s{S_XOFF}, s{S_T0}, 1152")
    a(f"s_lshl_b32 s{S_WOFF}, s{S_WAVE}, 16")
    a(f"s_and_b32 s{S_T1}, s2, 31")
    a(f"s_lshl_b32 s{S_T1}, s{S_T1}, 8")
    a(f"s_add_u32 s{S_WOFF}, s{S_WOFF}, s{S_T1}")
    a(f"v_lshrrev_b32 v{V_T}, 4, v{V_LANE}")
    a(f"v_and_b32 v{V_T+1}, 15, v{V_LANE}")
    a(f"s_and_b32 s{S_T0}, s{S_WAVE}, 1")
    a(f"s_lshl_b32 s{S_T0}, s{S_T0}, 3")
    a(f"v_add_u32 v{V_T+2}, s{S_T0}, v{V_T}")
    a(f"v_xor_b32 v{V_T+3}, v{V_T+1}, v{V_T+2}")
    a(f"v_lshlrev_b32 v{V_T+3}, 4, v{V_T+3}")
    a(f"v_lshl_add_u32 v{V_KOFF0}, v{V_T}, 8, v{V_T+3}")
    a(f"v_add_u32 v{V_T+2}, 4, v{V_T+2}")
    a(f"v_xor_b32 v{V_T+3}, v{V_T+1}, v{V_T+2}")
    a(f"v_lshlrev_b32 v{V_T+3}, 4, v{V_T+3}")
    a(f"v_lshl_add_u32 v{V_KOFF1}, v{V_T}, 8, v{V_T+3}")
    a(f"v_lshlrev_b32 v{V_T+2}, 2, v{V_T}")
    a(f"v_xor_b32 v{V_T+3}, v{V_T+1}, v{V_T+2}")
    a(f"v_lshlrev_b32 v{V_T+3}, 4, v{V_T+3}")
    a(f"v_lshl_add_u32 v{V_VOFF}, v{V_T}, 8, v{V_T+3}")
    a(f"v_lshl_add_u32 v{V_WOFF}, v{V_T}, 13, v{V_T+3}")
    a(f"v_lshrrev_b32 v{V_T}, 3, v{V_LANE}")
    a(f"v_mul_u32_u24 v{V_T}, 1152, v{V_T}")
    a(f"v_and_b32 v{V_T+1}, 7, v{V_LANE}")
    a(f"v_lshrrev_b32 v{V_T+2}, 4, v{V_LANE}")
    a(f"v_xor_b32 v{V_T+1}, v{V_T+1}, v{V_T+2}")
    a(f"v_lshl_add_u32 v{V_XOFF0}, v{V_T+1}, 4, v{V_T}")
    a(f"v_xor_b32 v{V_T+1}, 4, v{V_T+1}")
    a(f"v_lshl_add_u32 v{V_XOFF1}, v{V_T+1}, 4, v{V_T}")

    def issue(seq):
        if nodma: return
        base = (seq % NS) * SLOT
        if seq < NQ:
            parts = ((0, SRD_X, S_XOFF, (V_XOFF0, V_XOFF1), 8 * 1152), (16384, SRD_W, S_WOFF, (V_WOFF, V_WOFF), 4 * 8192))
        else:
            parts = ((0, SRD_K, S_KVOFF, (V_KOFF0, V_KOFF1), 1024), (16384, SRD_V, S_KVOFF, (V_VOFF, V_VOFF), 1024))
        for part, srd, soff, voffs, jstride in parts:
            for j in range(2):
                a(f"s_add_u32 s{S_T0}, s{S_LDSW}, {base + part + j*1024}")
                a(f"s_mov_b32 m0, s{S_T0}")
                a(f"s_add_u32 s{S_T1}, s{soff}, {j*jstride}")
                a(f"buffer_load_dwordx4 v{voffs[j]}, s[{srd}:{srd+3}], s{S_T1} offen" + (" nt" if (nt and seq >= NQ) else "") + " lds")
        if seq < NQ:
            a(f"s_add_u32 s{S_XOFF}, s{S_XOFF}, 128")
            a(f"s_add_u32 s{S_WOFF}, s{S_WOFF}, {64*8192}")
        else:
            a(f"s_add_u32 s{S_KVOFF}, s{S_KVOFF}, {64*256}")

    for s_ in range(DIST):
        issue(s_)

    a(f"s_lshl_b32 s{S_T0}, s{S_G}, 5")
    a(f"v_and_b32 v{V_T}, 31, v{V_LANE}")
    a(f"v_add_u32 v{V_T}, s{S_T0}, v{V_T}")
    a(f"v_lshlrev_b32 v{V_T}, 8, v{V_T}")
    a(f"v_lshrrev_b32 v{V_T+1}, 5, v{V_LANE}")
    a(f"v_and_b32 v{V_T+2}, 15, v{V_LANE}")
    a(f"v_xor_b32 v{V_T+1}, v{V_T+1}, v{V_T+2}")
    for ks in range(8):
        a(f"v_xor_b32 v{V_T+2}, {2*ks}, v{V_T+1}")
        a(f"v_lshl_add_u32 v{V_KAD+ks}, v{V_T+2}, 4, v{V_T}")
    a(f"v_lshrrev_b32 v{V_T+4}, 5, v{V_LANE}")
    a(f"v_lshrrev_b32 v{V_T+1}, 2, v{V_LANE}")
    a(f"v_and_b32 v{V_T+1}, 3, v{V_T+1}")
    a(f"v_lshlrev_b32 v{V_T}, 2, v{V_T+4}")
    a(f"v_add_u32 v{V_T}, v{V_T}, v{V_T+1}")
    a(f"v_add_u32 v{V_T}, s{S_T0}, v{V_T}")
    a(f"v_lshlrev_b32 v{V_T}, 8, v{V_T}")
    a(f"v_add_u32 v{V_T}, 16384, v{V_T}")
    a(f"v_and_b32 v{V_T+2}, 1, v{V_LANE}")
    a(f"v_lshl_add_u32 v{V_T}, v{V_T+2}, 3, v{V_T}")
    a(f"v_lshlrev_b32 v{V_T+5}, 3, v{V_T+4}")
    a(f"v_add_u32 v{V_T+5}, v{V_T+5}, v{V_T+1}")
    a(f"v_lshlrev_b32 v{V_T+5}, 8, v{V_T+5}")
    a(f"v_add_u32 v{V_T+5}, 16384, v{V_T+5}")
    a(f"v_lshl_add_u32 v{V_T+5}, v{V_T+2}, 3, v{V_T+5}")
    a(f"v_lshlrev_b32 v{V_T+1}, 2, v{V_T+1}")
    a(f"v_lshrrev_b32 v{V_T+2}, 4, v{V_LANE}")
    a(f"v_and_b32 v{V_T+2}, 1, v{V_T+2}")
    a(f"v_lshlrev_b32 v{V_T+2}, 1, v{V_T+2}")
    a(f"v_lshrrev_b32 v{V_T+3}, 1, v{V_LANE}")
    a(f"v_and_b32 v{V_T+3}, 1, v{V_T+3}")
    a(f"v_add_u32 v{V_T+2}, v{V_T+2}, v{V_T+3}")
    for db in range(4):
        a(f"v_add_u32 v{V_T+3}, {4*db}, v{V_T+2}")
        a(f"v_xor_b32 v{V_T+3}, v{V_T+3}, v{V_T+1}")
        a(f"v_lshl_add_u32 v{V_VAD+db}, v{V_T+3}, 4, v{V_T}")
    a(f"s_lshl_b32 s{S_T1}, s{S_G}, 3")
    for i in range(2):
        a(f"v_add_u32 v{V_T+3}, s{S_T1}, v{V_T+2}")
        if i: a(f"v_add_u32 v{V_T+3}, 4, v{V_T+3}")
        a(f"v_xor_b32 v{V_T+3}, v{V_T+3}, v{V_T+1}")
        a(f"v_lshl_add_u32 v{V_P+i}, v{V_T+3}, 4, v{V_T+5}")
        a(f"v_add_u32 v{V_P+2+i}, 65536, v{V_P+i}")
    a(f"s_lshl_b32 s{S_T1}, s{S_QB}, 5")
    a(f"v_and_b32 v{V_T}, 31, v{V_LANE}")
    a(f"v_add_u32 v{V_T}, s{S_T1}, v{V_T}")
    a(f"v_lshlrev_b32 v{V_T}, 7, v{V_T}")
    a(f"v_lshrrev_b32 v{V_T+1}, 1, v{V_LANE}")
    a(f"v_and_b32 v{V_T+1}, 7, v{V_T+1}")
    a(f"v_xor_b32 v{V_T+1}, v{V_T+1}, v{V_T+4}")
    for ks in range(4):
        a(f"v_xor_b32 v{V_T+2}, {2*ks}, v{V_T+1}")
        a(f"v_lshl_add_u32 v{V_XAD+ks}, v{V_T+2}, 4, v{V_T}")
        a(f"v_add_u32 v{V_P+4+ks}, 65536, v{V_XAD+ks}")
    for ks in range(8):
        a(f"v_add_u32 v{V_KC+ks}, 65536, v{V_KAD+ks}")
    for db in range(4):
        a(f"v_add_u32 v{V_VC+db}, 65536, v{V_VAD+db}")
    a(f"v_mov_b32 v{V_M}, 0xff800000")
    a(f"v_mov_b32 v{V_L}, 0")
    for r in range(32):
        a(f"v_mov_b32 v{V_O+r}, 0")

    NDMA = 4
    def head(seq):
        a(f"s_waitcnt vmcnt({NDMA*min(DIST-1, NSEQ-1-seq)})")
        a("s_barrier")
        if seq + DIST < NSEQ:
            issue(seq + DIST)

    def qstep(seq):
        head(seq)
        if nocompute: return
        slot = seq % NS
        hi = slot >= 2
        so = (slot % 2) * SLOT
        def qreads(ks):
            xa = (V_P + 4 + ks) if hi else (V_XAD + ks)
            a(f"ds_read_b128 v[{V_KF+4*ks}:{V_KF+4*ks+3}], v{xa} offset:{so}")
            for i in range(2):
                wa = (V_P + 2 + i) if hi else (V_P + i)
                r = V_VF + (ks * 2 + i) * 4
                for u in range(2):
                    a(f"ds_read_b64_tr_b16 v[{r+2*u}:{r+2*u+1}], v{wa} offset:{so+(16*ks+4*u)*256}")
        qreads(0); qreads(1)
        for ks in range(4):
            if ks + 2 < 4:
                qreads(ks + 2)
            a(f"s_waitcnt lgkmcnt({5*min(2, 3-ks)})")
            for i in range(2):
                r = V_VF + (ks * 2 + i) * 4
                o = V_O + 16 * i
                a(f"v_mfma_f32_32x32x16_bf16 v[{o}:{o+15}], v[{r}:{r+3}], v[{V_KF+4*ks}:{V_KF+4*ks+3}], v[{o}:{o+15}]")

    uidc = [0]
    def kvstep(seq):
        uid = uidc[0]; uidc[0] += 1
        head(seq)
        if nocompute: return
        slot = seq % NS
        KA = V_KAD if slot < 2 else V_KC
        VA = V_VAD if slot < 2 else V_VC
        so = (slot % 2) * SLOT
        for ks in range(8):
            a(f"ds_read_b128 v[{V_KF+4*ks}:{V_KF+4*ks+3}], v{KA+ks} offset:{so}")
        for ks in range(8):
            a(f"s_waitcnt lgkmcnt({7-ks})")
            c = "0" if ks == 0 else f"v[{V_S}:{V_S+15}]"
            a(f"v_mfma_f32_32x32x16_bf16 v[{V_S}:{V_S+15}], v[{V_KF+4*ks}:{V_KF+4*ks+3}], v[{V_Q+4*ks}:{V_Q+4*ks+3}], {c}")
        for t in range(2):
            for db in range(4):
                r = V_VF + (t * 4 + db) * 4
                for u in range(2):
                    a(f"ds_read_b64_tr_b16 v[{r+2*u}:{r+2*u+1}], v{VA+db} offset:{so+(16*t+8*u)*256}")
        a("s_nop 7"); a("s_nop 3")
        S = V_S; T = V_T
        a(f"v_max3_f32 v{T}, v{S}, v{S+1}, v{S+2}")
        a(f"v_max3_f32 v{T+1}, v{S+3}, v{S+4}, v{S+5}")
        a(f"v_max3_f32 v{T+2}, v{S+6}, v{S+7}, v{S+8}")
        a(f"v_max3_f32 v{T+3}, v{S+9}, v{S+10}, v{S+11}")
        a(f"v_max3_f32 v{T+4}, v{S+12}, v{S+13}, v{S+14}")
        a(f"v_max3_f32 v{T}, v{T}, v{T+1}, v{T+2}")
        a(f"v_max3_f32 v{T+3}, v{T+3}, v{T+4}, v{S+15}")
        a(f"v_max_f32 v{T}, v{T}, v{T+3}")
        a(f"v_mov_b32 v{T+1}, v{T}")
        a("s_nop 1")
        a(f"v_permlane32_swap_b32 v{T}, v{T+1}")
        a(f"v_max_f32 v{T}, v{T}, v{T+1}")
        a(f"v_mul_f32 v{T}, s{S_C}, v{T}")
        a(f"v_max_f32 v{T+1}, v{V_M}, v{T}")
        a(f"v_sub_f32 v{T+2}, v{T+1}, v{V_M}")
        a(f"v_cmp_gt_f32 vcc, v{T+2}, s{S_THR}")
        a("s_cmp_lg_u64 vcc, 0")
        a(f"s_cbranch_scc0 {name}_skip{uid}")
        a(f"v_sub_f32 v{T+2}, v{V_M}, v{T+1}")
        a(f"v_exp_f32 v{V_ALPHA}, v{T+2}")
        a(f"v_mov_b32 v{V_M}, v{T+1}")
        a(f"v_mul_f32 v{V_L}, v{V_L}, v{V_ALPHA}")
        for r in range(64):
            a(f"v_mul_f32 v{V_O+r}, v{V_O+r}, v{V_ALPHA}")
        a.label(f"{name}_skip{uid}")
        for i in range(16):
            a(f"v_fma_f32 v{S+i}, v{S+i}, s{S_C}, -v{V_M}")
        for i in range(16):
            a(f"v_exp_f32 v{S+i}, v{S+i}")
        for i in range(0, 16, 2):
            a(f"v_add_f32 v{T+2}, v{S+i}, v{S+i+1}")
            a(f"v_add_f32 v{V_L}, v{V_L}, v{T+2}")
        for i in range(8):
            a(f"v_cvt_pk_bf16_f32 v{V_P+i}, v{S+2*i}, v{S+2*i+1}")
        a("s_nop 1")
        n = 0
        for t in range(2):
            for db in range(4):
                r = V_VF + (t * 4 + db) * 4
                a(f"s_waitcnt lgkmcnt({14 - 2*n})"); n += 1
                o = V_O + 16 * db
                a(f"v_mfma_f32_32x32x16_bf16 v[{o}:{o+15}], v[{r}:{r+3}], v[{V_P+4*t}:{V_P+4*t+3}], v[{o}:{o+15}]")

    for seq in range(NQ):
        qstep(seq)
    a("s_nop 7"); a("s_nop 7")
    a(f"s_lshl_b32 s{S_T1}, s{S_QB}, 5")
    a(f"v_and_b32 v{V_T}, 31, v{V_LANE}")
    a(f"v_add_u32 v{V_T}, s{S_T1}, v{V_T}")
    a(f"v_lshlrev_b32 v{V_T}, 8, v{V_T}")
    a(f"v_add_u32 v{V_T}, {QX}, v{V_T}")
    a(f"v_lshrrev_b32 v{V_T+1}, 5, v{V_LANE}")
    a(f"v_lshl_add_u32 v{V_T}, v{V_T+1}, 3, v{V_T}")
    a(f"v_and_b32 v{V_T+1}, 15, v{V_LANE}")
    a(f"s_lshl_b32 s{S_T1}, s{S_G}, 3")
    for i in range(2):
        for gg in range(4):
            o = V_O + 16 * i + 4 * gg
            a(f"v_cvt_pk_bf16_f32 v{V_KF}, v{o}, v{o+1}")
            a(f"v_cvt_pk_bf16_f32 v{V_KF+1}, v{o+2}, v{o+3}")
            a(f"v_add_u32 v{V_T+2}, {4*i+gg}, s{S_T1}") if False else None
            a(f"s_add_u32 s{S_T2}, s{S_T1}, {4*i+gg}")
            a(f"v_xor_b32 v{V_T+2}, s{S_T2}, v{V_T+1}")
            a(f"v_lshl_add_u32 v{V_T+2}, v{V_T+2}, 4, v{V_T}")
            a(f"ds_write_b64 v{V_T+2}, v[{V_KF}:{V_KF+1}]")
    a("s_waitcnt lgkmcnt(0)")
    a("s_barrier")
    a(f"v_lshrrev_b32 v{V_T+2}, 5, v{V_LANE}")
    a(f"v_xor_b32 v{V_T+2}, v{V_T+2}, v{V_T+1}")
    a(f"v_lshrrev_b32 v{V_T+3}, 5, v{V_LANE}")
    a(f"v_lshlrev_b32 v{V_T+3}, 3, v{V_T+3}")
    a(f"v_sub_u32 v{V_T+3}, v{V_T}, v{V_T+3}")
    for ks in range(8):
        a(f"v_xor_b32 v{V_T+4}, {2*ks}, v{V_T+2}")
        a(f"v_lshl_add_u32 v{V_T+4}, v{V_T+4}, 4, v{V_T+3}")
        a(f"ds_read_b128 v[{V_Q+4*ks}:{V_Q+4*ks+3}], v{V_T+4}")
    for r in range(64):
        a(f"v_mov_b32 v{V_O+r}, 0")
    a("s_waitcnt lgkmcnt(0)")

    for seq in range(NQ, NSEQ):
        kvstep(seq)

    a("s_nop 7"); a("s_nop 7")
    a(f"v_mov_b32 v{V_T}, v{V_L}")
    a("s_nop 1")
    a(f"v_permlane32_swap_b32 v{V_L}, v{V_T}")
    a(f"v_add_f32 v{V_L}, v{V_L}, v{V_T}")
    a("s_barrier")
    a(f"v_lshlrev_b32 v{V_T}, 2, v{V_LANE}")
    a(f"s_mul_i32 s{S_T0}, s{S_QB}, {66*256}")
    a(f"v_add_u32 v{V_T}, s{S_T0}, v{V_T}")
    a(f"s_cmp_eq_u32 s{S_G}, 0")
    a(f"s_cbranch_scc1 {name}_g0")
    for r in range(64):
        a(f"ds_write_b32 v{V_T}, v{V_O+r} offset:{256*r}")
    a(f"ds_write_b32 v{V_T}, v{V_M} offset:{256*64}")
    a(f"ds_write_b32 v{V_T}, v{V_L} offset:{256*65}")
    a("s_waitcnt lgkmcnt(0)")
    a("s_barrier")
    a(f"s_branch {name}_done")
    a.label(f"{name}_g0")
    a("s_barrier")
    M1, L1 = V_T + 1, V_T + 2
    a(f"ds_read_b32 v{M1}, v{V_T} offset:{256*64}")
    a(f"ds_read_b32 v{L1}, v{V_T} offset:{256*65}")
    a("s_waitcnt lgkmcnt(0)")
    MN, A0, A1 = V_T + 3, V_T + 4, V_T + 5
    a(f"v_max_f32 v{MN}, v{V_M}, v{M1}")
    a(f"v_sub_f32 v{A0}, v{V_M}, v{MN}")
    a(f"v_sub_f32 v{A1}, v{M1}, v{MN}")
    a(f"v_exp_f32 v{A0}, v{A0}")
    a(f"v_exp_f32 v{A1}, v{A1}")
    a("s_nop 0")
    a(f"v_mul_f32 v{V_L}, v{V_L}, v{A0}")
    a(f"v_fma_f32 v{V_L}, v{L1}, v{A1}, v{V_L}")
    a(f"v_rcp_f32 v{V_L}, v{V_L}")
    a("s_nop 0")
    a(f"v_mul_f32 v{A0}, v{A0}, v{V_L}")
    a(f"v_mul_f32 v{A1}, v{A1}, v{V_L}")
    for blk in range(4):
        for r in range(16):
            a(f"ds_read_b32 v{V_KF+r}, v{V_T} offset:{256*(16*blk+r)}")
        a("s_waitcnt lgkmcnt(0)")
        for r in range(16):
            o = V_O + 16 * blk + r
            a(f"v_mul_f32 v{o}, v{o}, v{A0}")
            a(f"v_fma_f32 v{o}, v{V_KF+r}, v{A1}, v{o}")
    OX = 98304
    a(f"s_lshl_b32 s{S_T0}, s{S_QB}, 13")
    a(f"s_add_u32 s{S_T0}, s{S_T0}, {OX}")
    a(f"v_and_b32 v{V_T+6}, 31, v{V_LANE}")
    a(f"v_lshlrev_b32 v{V_T+6}, 8, v{V_T+6}")
    a(f"v_add_u32 v{V_T+6}, s{S_T0}, v{V_T+6}")
    a(f"v_lshrrev_b32 v{V_T+7}, 5, v{V_LANE}")
    a(f"v_lshl_add_u32 v{V_S}, v{V_T+7}, 3, v{V_T+6}")
    a(f"v_and_b32 v{V_S+1}, 15, v{V_LANE}")
    for db in range(4):
        for gg in range(4):
            o = V_O + 16 * db + 4 * gg
            a(f"v_cvt_pk_bf16_f32 v{V_VF}, v{o}, v{o+1}")
            a(f"v_cvt_pk_bf16_f32 v{V_VF+1}, v{o+2}, v{o+3}")
            a(f"v_xor_b32 v{V_S+2}, {4*db+gg}, v{V_S+1}")
            a(f"v_lshl_add_u32 v{V_S+2}, v{V_S+2}, 4, v{V_S}")
            a(f"ds_write_b64 v{V_S+2}, v[{V_VF}:{V_VF+1}]")
    a("s_waitcnt lgkmcnt(0)")
    a(f"v_lshrrev_b32 v{V_S+3}, 4, v{V_LANE}")
    a(f"v_and_b32 v{V_S+4}, 15, v{V_LANE}")
    a(f"s_lshr_b32 s{S_T1}, s2, 5")
    a(f"s_lshl_b32 s{S_T1}, s{S_T1}, 7")
    a(f"s_lshl_b32 s{S_T2}, s{S_QB}, 5")
    a(f"s_add_u32 s{S_T1}, s{S_T1}, s{S_T2}")
    a(f"s_lshl_b32 s{S_T1}, s{S_T1}, 13")
    a(f"s_and_b32 s{S_T2}, s2, 31")
    a(f"s_lshl_b32 s{S_T2}, s{S_T2}, 8")
    a(f"s_add_u32 s{S_OOFF}, s{S_T1}, s{S_T2}")
    a(f"v_lshlrev_b32 v{V_S+5}, 13, v{V_S+3}")
    a(f"v_lshl_add_u32 v{V_S+5}, v{V_S+4}, 4, v{V_S+5}")
    for it in range(8):
        a(f"v_add_u32 v{V_S+6}, {4*it}, v{V_S+3}")
        a(f"v_and_b32 v{V_S+7}, 15, v{V_S+6}")
        a(f"v_xor_b32 v{V_S+7}, v{V_S+7}, v{V_S+4}")
        a(f"v_lshlrev_b32 v{V_S+7}, 4, v{V_S+7}")
        a(f"v_lshl_add_u32 v{V_S+7}, v{V_S+6}, 8, v{V_S+7}")
        a(f"v_add_u32 v{V_S+7}, s{S_T0}, v{V_S+7}")
        a(f"ds_read_b128 v[{V_KF+4*it}:{V_KF+4*it+3}], v{V_S+7}")
    for it in range(8):
        a(f"s_waitcnt lgkmcnt({7-it})")
        a(f"s_add_u32 s{S_T1}, s{S_OOFF}, {4*it*8192}")
        a(f"buffer_store_dwordx4 v[{V_KF+4*it}:{V_KF+4*it+3}], v{V_S+5}, s[{SRD_O}:{SRD_O+3}], s{S_T1} offen")
    a.label(f"{name}_done")
    a("s_endpgm")
    return a.text(), V_END, 163840, 256, None
```

```python
from gen_common import *

def gen_gemm(name, M, N, K, TM, TN, WNn, a_src, b_src, c_dst, lda, ldb, ldc, stages, KC=64):
    NKS = KC // 16
    dist = stages - 1
    NC = K // KC
    assert K % KC == 0
    WMn = 4 // WNn
    WM, WN = TM // WMn, TN // WNn
    MB, NB = WM // 32, WN // 32
    AROW = KC * 2
    ACPR = AROW // 16
    assert ACPR in (8, 16)
    A_BYTES = TM * AROW
    B_BYTES = KC * TN * 2
    ST_BYTES = A_BYTES + B_BYTES
    ROWB = TN * 2
    CPR = ROWB // 16
    assert CPR in (8, 16)
    nA = A_BYTES // 1024
    nB = B_BYTES // 1024
    rowsA = 1024 // AROW
    rowsB = 1024 // ROWB
    assert nA % 4 == 0 and nB % 4 == 0
    nAw, nBw = nA // 4, nB // 4
    NDMA = nAw + nBw
    NTM, NTN = M // TM, N // TN
    ntiles = NTM * NTN
    lds_total = stages * ST_BYTES

    a = Asm()
    SRD_A, SRD_B, SRD_C = 4, 8, 12
    S_M0T, S_N0T, S_WAVE = 16, 17, 18
    S_OFFA, S_OFFB = 20, 21
    S_T0, S_T1, S_T2 = 22, 23, 24
    S_CNT = 25
    S_LDSA, S_LDSB = 26, 27
    S_COFF = 28
    V_LANE = 1
    V_OFFA0, V_OFFA1, V_OFFB = 2, 3, 4
    V_OFFC = 5
    V_T = 6
    V_AADDR = 10
    V_BADDR = V_AADDR + NKS
    V_ACUR = V_BADDR + NB
    V_BCUR = V_ACUR + NKS
    V_AF = ((V_BCUR + NB + 3) // 4) * 4
    V_BF = V_AF + 2 * MB * 4
    V_ACC = V_BF + 2 * NB * 4
    nacc = MB * NB * 16
    V_END = V_ACC + nacc

    a(f"s_cmp_ge_u32 s2, {ntiles}")
    a(f"s_cbranch_scc1 {name}_done")
    a(f"s_load_dwordx2 s[{SRD_A}:{SRD_A+1}], s[0:1], {a_src[0]}")
    a(f"s_load_dwordx2 s[{SRD_B}:{SRD_B+1}], s[0:1], {b_src[0]}")
    a(f"s_load_dwordx2 s[{SRD_C}:{SRD_C+1}], s[0:1], {c_dst[0]}")
    assert NTM & (NTM - 1) == 0
    a(f"s_and_b32 s{S_M0T}, s2, {NTM-1}")
    a(f"s_lshr_b32 s{S_N0T}, s2, {NTM.bit_length()-1}")
    a(f"s_mul_i32 s{S_M0T}, s{S_M0T}, {TM}")
    a(f"s_mul_i32 s{S_N0T}, s{S_N0T}, {TN}")
    a(f"v_lshrrev_b32 v{V_T}, 6, v0")
    a(f"v_and_b32 v{V_LANE}, 63, v0")
    a("s_nop 0")
    a(f"v_readfirstlane_b32 s{S_WAVE}, v{V_T}")
    a("s_waitcnt lgkmcnt(0)")
    for sd, src in ((SRD_A, a_src), (SRD_B, b_src), (SRD_C, c_dst)):
        if src[1]:
            a(f"s_add_u32 s{sd}, s{sd}, {src[1]}")
            a(f"s_addc_u32 s{sd+1}, s{sd+1}, 0")
        a(f"s_and_b32 s{sd+1}, s{sd+1}, 0xffff")
        a(f"s_mov_b32 s{sd+2}, {src[2]}")
        a(f"s_mov_b32 s{sd+3}, 0x00020000")
    if ACPR == 8:
        a(f"v_lshrrev_b32 v{V_T}, 3, v{V_LANE}")
        a(f"s_mov_b32 s{S_T0}, {lda}")
        a(f"v_mul_lo_u32 v{V_OFFA0}, v{V_T}, s{S_T0}")
        a(f"v_and_b32 v{V_T}, 7, v{V_LANE}")
        a(f"v_lshrrev_b32 v{V_T+1}, 4, v{V_LANE}")
        a(f"v_xor_b32 v{V_T}, v{V_T}, v{V_T+1}")
        a(f"v_lshlrev_b32 v{V_T+1}, 4, v{V_T}")
        a(f"v_add_u32 v{V_OFFA1}, v{V_OFFA0}, v{V_T+1}")
        a(f"v_xor_b32 v{V_T+1}, 64, v{V_T+1}")
        a(f"v_add_u32 v{V_T+2}, v{V_OFFA0}, v{V_T+1}")
        a(f"v_mov_b32 v{V_OFFA0}, v{V_OFFA1}")
        a(f"v_mov_b32 v{V_OFFA1}, v{V_T+2}")
        assert nAw % 2 == 0
    else:
        raise NotImplementedError
    if CPR == 16:
        a(f"v_lshrrev_b32 v{V_T}, 4, v{V_LANE}")
        a(f"v_lshlrev_b32 v{V_T+1}, 2, v{V_T}")
        a(f"v_and_b32 v{V_T+2}, 15, v{V_LANE}")
        a(f"v_xor_b32 v{V_T+1}, v{V_T+1}, v{V_T+2}")
    else:
        a(f"v_lshrrev_b32 v{V_T}, 3, v{V_LANE}")
        a(f"v_lshrrev_b32 v{V_T+1}, 4, v{V_LANE}")
        a(f"v_and_b32 v{V_T+1}, 1, v{V_T+1}")
        a(f"v_lshlrev_b32 v{V_T+1}, 2, v{V_T+1}")
        a(f"v_and_b32 v{V_T+2}, 7, v{V_LANE}")
        a(f"v_xor_b32 v{V_T+1}, v{V_T+1}, v{V_T+2}")
    a(f"s_mov_b32 s{S_T0}, {ldb}")
    a(f"v_mul_lo_u32 v{V_OFFB}, v{V_T}, s{S_T0}")
    a(f"v_lshlrev_b32 v{V_T+1}, 4, v{V_T+1}")
    a(f"v_add_u32 v{V_OFFB}, v{V_OFFB}, v{V_T+1}")
    a(f"s_mul_i32 s{S_T0}, s{S_WAVE}, {rowsA*nAw}")
    a(f"s_add_u32 s{S_T0}, s{S_T0}, s{S_M0T}")
    a(f"s_mul_i32 s{S_OFFA}, s{S_T0}, {lda}")
    a(f"s_mul_i32 s{S_OFFB}, s{S_WAVE}, {rowsB*nBw*ldb}")
    a(f"s_lshl_b32 s{S_T0}, s{S_N0T}, 1")
    a(f"s_add_u32 s{S_OFFB}, s{S_OFFB}, s{S_T0}")
    a(f"s_mul_i32 s{S_LDSA}, s{S_WAVE}, {nAw*1024}")
    a(f"s_mul_i32 s{S_LDSB}, s{S_WAVE}, {nBw*1024}")
    a(f"s_add_u32 s{S_LDSB}, s{S_LDSB}, {A_BYTES}")

    def issue_dma(stage):
        for j in range(nAw):
            a(f"s_add_u32 s{S_T0}, s{S_LDSA}, {stage*ST_BYTES + j*1024}")
            a(f"s_mov_b32 m0, s{S_T0}")
            a(f"s_add_u32 s{S_T1}, s{S_OFFA}, {rowsA*j*lda}")
            vo = V_OFFA0 if j % 2 == 0 else V_OFFA1
            a(f"buffer_load_dwordx4 v{vo}, s[{SRD_A}:{SRD_A+3}], s{S_T1} offen lds")
        for j in range(nBw):
            a(f"s_add_u32 s{S_T0}, s{S_LDSB}, {stage*ST_BYTES + j*1024}")
            a(f"s_mov_b32 m0, s{S_T0}")
            a(f"s_add_u32 s{S_T1}, s{S_OFFB}, {rowsB*j*ldb}")
            a(f"buffer_load_dwordx4 v{V_OFFB}, s[{SRD_B}:{SRD_B+3}], s{S_T1} offen lds")
        a(f"s_add_u32 s{S_OFFA}, s{S_OFFA}, {KC*2}")
        a(f"s_add_u32 s{S_OFFB}, s{S_OFFB}, {KC*ldb}")

    lw = WNn.bit_length() - 1
    a(f"s_lshr_b32 s{S_T0}, s{S_WAVE}, {lw}")
    a(f"s_and_b32 s{S_T1}, s{S_WAVE}, {WNn-1}")
    a(f"s_mul_i32 s{S_T0}, s{S_T0}, {WM}")
    a(f"s_mul_i32 s{S_T1}, s{S_T1}, {WN}")
    a(f"v_and_b32 v{V_T}, 31, v{V_LANE}")
    a(f"v_add_u32 v{V_T}, s{S_T0}, v{V_T}")
    a(f"v_lshlrev_b32 v{V_T}, {AROW.bit_length()-1}, v{V_T}")
    a(f"v_lshrrev_b32 v{V_T+1}, 5, v{V_LANE}")
    a(f"v_lshrrev_b32 v{V_T+2}, 1, v{V_LANE}")
    a(f"v_and_b32 v{V_T+2}, 7, v{V_T+2}")
    a(f"v_xor_b32 v{V_T+1}, v{V_T+1}, v{V_T+2}")
    for ks in range(NKS):
        a(f"v_xor_b32 v{V_T+2}, {2*ks}, v{V_T+1}")
        a(f"v_lshl_add_u32 v{V_AADDR+ks}, v{V_T+2}, 4, v{V_T}")
    a(f"v_lshrrev_b32 v{V_T}, 5, v{V_LANE}")
    a(f"v_lshlrev_b32 v{V_T}, 3, v{V_T}")
    a(f"v_lshrrev_b32 v{V_T+1}, 2, v{V_LANE}")
    a(f"v_and_b32 v{V_T+1}, 3, v{V_T+1}")
    a(f"v_add_u32 v{V_T}, v{V_T}, v{V_T+1}")
    a(f"v_mul_u32_u24 v{V_T}, {ROWB}, v{V_T}")
    a(f"v_add_u32 v{V_T}, {A_BYTES}, v{V_T}")
    a(f"v_and_b32 v{V_T+2}, 1, v{V_LANE}")
    a(f"v_lshl_add_u32 v{V_T}, v{V_T+2}, 3, v{V_T}")
    if CPR == 16:
        a(f"v_lshlrev_b32 v{V_T+1}, 2, v{V_T+1}")
    else:
        a(f"v_lshrrev_b32 v{V_T+1}, 1, v{V_T+1}")
        a(f"v_lshlrev_b32 v{V_T+1}, 2, v{V_T+1}")
    a(f"v_lshrrev_b32 v{V_T+2}, 4, v{V_LANE}")
    a(f"v_and_b32 v{V_T+2}, 1, v{V_T+2}")
    a(f"v_lshlrev_b32 v{V_T+2}, 1, v{V_T+2}")
    a(f"v_lshrrev_b32 v{V_T+3}, 1, v{V_LANE}")
    a(f"v_and_b32 v{V_T+3}, 1, v{V_T+3}")
    a(f"v_add_u32 v{V_T+2}, v{V_T+2}, v{V_T+3}")
    a(f"s_lshr_b32 s{S_T1}, s{S_T1}, 3")
    a(f"v_add_u32 v{V_T+2}, s{S_T1}, v{V_T+2}")
    for nb in range(NB):
        a(f"v_add_u32 v{V_T+3}, {4*nb}, v{V_T+2}")
        a(f"v_xor_b32 v{V_T+3}, v{V_T+3}, v{V_T+1}")
        a(f"v_lshl_add_u32 v{V_BADDR+nb}, v{V_T+3}, 4, v{V_T}")
    for r in range(nacc):
        a(f"v_mov_b32 v{V_ACC+r}, 0")

    npro = min(dist, NC)
    for c in range(npro):
        issue_dma(c % stages)

    def set_addr(stage, which):
        base = V_ACUR if which == 0 else None
    cur_stage_regs = {}

    def calc_addr(stage):
        for ks in range(NKS):
            a(f"v_add_u32 v{V_ACUR+ks}, {stage*ST_BYTES}, v{V_AADDR+ks}")
        for nb in range(NB):
            a(f"v_add_u32 v{V_BCUR+nb}, {stage*ST_BYTES}, v{V_BADDR+nb}")

    nreads = MB + 2 * NB
    def reads(ks, st):
        for mb in range(MB):
            r = V_AF + (st * MB + mb) * 4
            a(f"ds_read_b128 v[{r}:{r+3}], v{V_ACUR+ks} offset:{mb*32*AROW}")
        for nb in range(NB):
            r = V_BF + (st * NB + nb) * 4
            for u in range(2):
                a(f"ds_read_b64_tr_b16 v[{r+2*u}:{r+2*u+1}], v{V_BCUR+nb} offset:{(16*ks+4*u)*ROWB}")
    def mfmas(st):
        for nb in range(NB):
            for mb in range(MB):
                acc = V_ACC + (nb * MB + mb) * 16
                ra = V_BF + (st * NB + nb) * 4
                rb = V_AF + (st * MB + mb) * 4
                a(f"v_mfma_f32_32x32x16_bf16 v[{acc}:{acc+15}], v[{ra}:{ra+3}], v[{rb}:{rb+3}], v[{acc}:{acc+15}]")

    a(f"s_waitcnt vmcnt({NDMA*(npro-1)})")
    a("s_barrier")
    calc_addr(0)
    reads(0, 0)

    def outstanding_after_wait(c):
        issued = min(c + dist, NC)
        return NDMA * max(0, issued - (c + 2))

    def chunk(c_stage, c_is_last, issue, vmw, st0):
        st = st0
        nxt = (c_stage + 1) % stages
        if not c_is_last:
            a(f"s_waitcnt vmcnt({vmw})")
            a("s_barrier")
            if issue:
                issue_dma((c_stage + dist) % stages)
        for ks in range(NKS):
            if ks + 1 < NKS:
                reads(ks + 1, st ^ 1)
                a(f"s_waitcnt lgkmcnt({nreads})")
            elif not c_is_last:
                calc_addr(nxt)
                reads(0, st ^ 1)
                a(f"s_waitcnt lgkmcnt({nreads})")
            else:
                a("s_waitcnt lgkmcnt(0)")
            mfmas(st)
            st ^= 1
        return st

    if NC <= 12:
        st = 0
        for c in range(NC):
            st = chunk(c % stages, c == NC - 1, c + dist < NC, outstanding_after_wait(c), st)
    else:
        assert NKS % 2 == 0
        n_issue = NC - dist
        ngroups = n_issue // stages
        a(f"s_mov_b32 s{S_CNT}, {ngroups}")
        a.label(f"{name}_loop")
        st = 0
        for s in range(stages):
            st = chunk(s, False, True, NDMA * (dist - 2), st)
        assert st == 0
        a(f"s_sub_u32 s{S_CNT}, s{S_CNT}, 1")
        a(f"s_cmp_lg_u32 s{S_CNT}, 0")
        a(f"s_cbranch_scc1 {name}_loop")
        for c in range(ngroups * stages, NC):
            st = chunk(c % stages, c == NC - 1, c + dist < NC, outstanding_after_wait(c), st)

    a("s_nop 7"); a("s_nop 7")
    a(f"s_lshr_b32 s{S_T0}, s{S_WAVE}, {lw}")
    a(f"s_and_b32 s{S_T1}, s{S_WAVE}, {WNn-1}")
    a(f"s_mul_i32 s{S_T0}, s{S_T0}, {WM}")
    a(f"s_mul_i32 s{S_T1}, s{S_T1}, {WN*2}")
    a(f"v_and_b32 v{V_T}, 31, v{V_LANE}")
    a(f"v_add_u32 v{V_T}, s{S_T0}, v{V_T}")
    a(f"s_mov_b32 s{S_T2}, {ldc}")
    a(f"v_mul_lo_u32 v{V_OFFC}, v{V_T}, s{S_T2}")
    a(f"v_lshrrev_b32 v{V_T}, 5, v{V_LANE}")
    a(f"v_lshl_add_u32 v{V_OFFC}, v{V_T}, 3, v{V_OFFC}")
    a(f"v_add_u32 v{V_OFFC}, s{S_T1}, v{V_OFFC}")
    for mb in range(MB):
        a(f"s_add_u32 s{S_T0}, s{S_M0T}, {32*mb}")
        a(f"s_mul_i32 s{S_COFF+mb}, s{S_T0}, {ldc}")
        a(f"s_lshl_b32 s{S_T0}, s{S_N0T}, 1")
        a(f"s_add_u32 s{S_COFF+mb}, s{S_COFF+mb}, s{S_T0}")
    k = 0
    for nb in range(NB):
        for mb in range(MB):
            acc = V_ACC + (nb * MB + mb) * 16
            for g in range(4):
                t = V_AF + 2 * (k % 8); k += 1
                a(f"v_cvt_pk_bf16_f32 v{t}, v{acc+4*g}, v{acc+4*g+1}")
                a(f"v_cvt_pk_bf16_f32 v{t+1}, v{acc+4*g+2}, v{acc+4*g+3}")
                a(f"buffer_store_dwordx2 v[{t}:{t+1}], v{V_OFFC}, s[{SRD_C}:{SRD_C+3}], s{S_COFF+mb} offen offset:{(nb*32+8*g)*2}")
    a.label(f"{name}_done")
    a("s_endpgm")
    return a.text(), V_END, lds_total, ntiles
```

```python
from gen_common import *

def gen_gemm(name, M, N, K, TM, TN, WNn, a_src, b_src, c_dst, lda, ldb, ldc, stages, KC=64):
    NKS = KC // 16
    dist = stages - 1
    NC = K // KC
    assert K % KC == 0
    WMn = 4 // WNn
    WM, WN = TM // WMn, TN // WNn
    MB, NB = WM // 32, WN // 32
    AROW = KC * 2
    ACPR = AROW // 16
    assert ACPR in (8, 16)
    A_BYTES = TM * AROW
    B_BYTES = KC * TN * 2
    ST_BYTES = A_BYTES + B_BYTES
    ROWB = TN * 2
    CPR = ROWB // 16
    assert CPR in (8, 16)
    nA = A_BYTES // 1024
    nB = B_BYTES // 1024
    rowsA = 1024 // AROW
    rowsB = 1024 // ROWB
    assert nA % 4 == 0 and nB % 4 == 0
    nAw, nBw = nA // 4, nB // 4
    NDMA = nAw + nBw
    NTM, NTN = M // TM, N // TN
    ntiles = NTM * NTN
    lds_total = stages * ST_BYTES

    a = Asm()
    SRD_A, SRD_B, SRD_C = 4, 8, 12
    S_M0T, S_N0T, S_WAVE = 16, 17, 18
    S_OFFA, S_OFFB = 20, 21
    S_T0, S_T1, S_T2 = 22, 23, 24
    S_CNT = 25
    S_LDSA, S_LDSB = 26, 27
    S_COFF = 28
    V_LANE = 1
    V_OFFA0, V_OFFA1, V_OFFB = 2, 3, 4
    V_OFFC = 5
    V_T = 6
    V_AADDR = 10
    V_BADDR = V_AADDR + NKS
    V_ACUR = V_BADDR + NB
    V_BCUR = V_ACUR + NKS
    V_AF = ((V_BCUR + NB + 3) // 4) * 4
    V_BF = V_AF + 2 * MB * 4
    V_ACC = V_BF + 2 * NB * 4
    nacc = MB * NB * 16
    V_END = V_ACC + nacc

    a(f"s_cmp_ge_u32 s2, {ntiles}")
    a(f"s_cbranch_scc1 {name}_done")
    a(f"s_load_dwordx2 s[{SRD_A}:{SRD_A+1}], s[0:1], {a_src[0]}")
    a(f"s_load_dwordx2 s[{SRD_B}:{SRD_B+1}], s[0:1], {b_src[0]}")
    a(f"s_load_dwordx2 s[{SRD_C}:{SRD_C+1}], s[0:1], {c_dst[0]}")
    assert NTM & (NTM - 1) == 0
    a(f"s_and_b32 s{S_M0T}, s2, {NTM-1}")
    a(f"s_lshr_b32 s{S_N0T}, s2, {NTM.bit_length()-1}")
    a(f"s_mul_i32 s{S_M0T}, s{S_M0T}, {TM}")
    a(f"s_mul_i32 s{S_N0T}, s{S_N0T}, {TN}")
    a(f"v_lshrrev_b32 v{V_T}, 6, v0")
    a(f"v_and_b32 v{V_LANE}, 63, v0")
    a("s_nop 0")
    a(f"v_readfirstlane_b32 s{S_WAVE}, v{V_T}")
    a("s_waitcnt lgkmcnt(0)")
    for sd, src in ((SRD_A, a_src), (SRD_B, b_src), (SRD_C, c_dst)):
        if src[1]:
            a(f"s_add_u32 s{sd}, s{sd}, {src[1]}")
            a(f"s_addc_u32 s{sd+1}, s{sd+1}, 0")
        a(f"s_and_b32 s{sd+1}, s{sd+1}, 0xffff")
        a(f"s_mov_b32 s{sd+2}, {src[2]}")
        a(f"s_mov_b32 s{sd+3}, 0x00020000")
    if ACPR == 8:
        a(f"v_lshrrev_b32 v{V_T}, 3, v{V_LANE}")
        a(f"s_mov_b32 s{S_T0}, {lda}")
        a(f"v_mul_lo_u32 v{V_OFFA0}, v{V_T}, s{S_T0}")
        a(f"v_and_b32 v{V_T}, 7, v{V_LANE}")
        a(f"v_lshrrev_b32 v{V_T+1}, 4, v{V_LANE}")
        a(f"v_xor_b32 v{V_T}, v{V_T}, v{V_T+1}")
        a(f"v_lshlrev_b32 v{V_T+1}, 4, v{V_T}")
        a(f"v_add_u32 v{V_OFFA1}, v{V_OFFA0}, v{V_T+1}")
        a(f"v_xor_b32 v{V_T+1}, 64, v{V_T+1}")
        a(f"v_add_u32 v{V_T+2}, v{V_OFFA0}, v{V_T+1}")
        a(f"v_mov_b32 v{V_OFFA0}, v{V_OFFA1}")
        a(f"v_mov_b32 v{V_OFFA1}, v{V_T+2}")
        assert nAw % 2 == 0
    else:
        raise NotImplementedError
    if CPR == 16:
        a(f"v_lshrrev_b32 v{V_T}, 4, v{V_LANE}")
        a(f"v_lshlrev_b32 v{V_T+1}, 2, v{V_T}")
        a(f"v_and_b32 v{V_T+2}, 15, v{V_LANE}")
        a(f"v_xor_b32 v{V_T+1}, v{V_T+1}, v{V_T+2}")
    else:
        a(f"v_lshrrev_b32 v{V_T}, 3, v{V_LANE}")
        a(f"v_lshrrev_b32 v{V_T+1}, 4, v{V_LANE}")
        a(f"v_and_b32 v{V_T+1}, 1, v{V_T+1}")
        a(f"v_lshlrev_b32 v{V_T+1}, 2, v{V_T+1}")
        a(f"v_and_b32 v{V_T+2}, 7, v{V_LANE}")
        a(f"v_xor_b32 v{V_T+1}, v{V_T+1}, v{V_T+2}")
    a(f"s_mov_b32 s{S_T0}, {ldb}")
    a(f"v_mul_lo_u32 v{V_OFFB}, v{V_T}, s{S_T0}")
    a(f"v_lshlrev_b32 v{V_T+1}, 4, v{V_T+1}")
    a(f"v_add_u32 v{V_OFFB}, v{V_OFFB}, v{V_T+1}")
    a(f"s_mul_i32 s{S_T0}, s{S_WAVE}, {rowsA*nAw}")
    a(f"s_add_u32 s{S_T0}, s{S_T0}, s{S_M0T}")
    a(f"s_mul_i32 s{S_OFFA}, s{S_T0}, {lda}")
    a(f"s_mul_i32 s{S_OFFB}, s{S_WAVE}, {rowsB*nBw*ldb}")
    a(f"s_lshl_b32 s{S_T0}, s{S_N0T}, 1")
    a(f"s_add_u32 s{S_OFFB}, s{S_OFFB}, s{S_T0}")
    a(f"s_mul_i32 s{S_LDSA}, s{S_WAVE}, {nAw*1024}")
    a(f"s_mul_i32 s{S_LDSB}, s{S_WAVE}, {nBw*1024}")
    a(f"s_add_u32 s{S_LDSB}, s{S_LDSB}, {A_BYTES}")

    def issue_dma(stage):
        for j in range(nAw):
            a(f"s_add_u32 s{S_T0}, s{S_LDSA}, {stage*ST_BYTES + j*1024}")
            a(f"s_mov_b32 m0, s{S_T0}")
            a(f"s_add_u32 s{S_T1}, s{S_OFFA}, {rowsA*j*lda}")
            vo = V_OFFA0 if j % 2 == 0 else V_OFFA1
            a(f"buffer_load_dwordx4 v{vo}, s[{SRD_A}:{SRD_A+3}], s{S_T1} offen lds")
        for j in range(nBw):
            a(f"s_add_u32 s{S_T0}, s{S_LDSB}, {stage*ST_BYTES + j*1024}")
            a(f"s_mov_b32 m0, s{S_T0}")
            a(f"s_add_u32 s{S_T1}, s{S_OFFB}, {rowsB*j*ldb}")
            a(f"buffer_load_dwordx4 v{V_OFFB}, s[{SRD_B}:{SRD_B+3}], s{S_T1} offen lds")
        a(f"s_add_u32 s{S_OFFA}, s{S_OFFA}, {KC*2}")
        a(f"s_add_u32 s{S_OFFB}, s{S_OFFB}, {KC*ldb}")

    lw = WNn.bit_length() - 1
    a(f"s_lshr_b32 s{S_T0}, s{S_WAVE}, {lw}")
    a(f"s_and_b32 s{S_T1}, s{S_WAVE}, {WNn-1}")
    a(f"s_mul_i32 s{S_T0}, s{S_T0}, {WM}")
    a(f"s_mul_i32 s{S_T1}, s{S_T1}, {WN}")
    a(f"v_and_b32 v{V_T}, 31, v{V_LANE}")
    a(f"v_add_u32 v{V_T}, s{S_T0}, v{V_T}")
    a(f"v_lshlrev_b32 v{V_T}, {AROW.bit_length()-1}, v{V_T}")
    a(f"v_lshrrev_b32 v{V_T+1}, 5, v{V_LANE}")
    a(f"v_lshrrev_b32 v{V_T+2}, 1, v{V_LANE}")
    a(f"v_and_b32 v{V_T+2}, 7, v{V_T+2}")
    a(f"v_xor_b32 v{V_T+1}, v{V_T+1}, v{V_T+2}")
    for ks in range(NKS):
        a(f"v_xor_b32 v{V_T+2}, {2*ks}, v{V_T+1}")
        a(f"v_lshl_add_u32 v{V_AADDR+ks}, v{V_T+2}, 4, v{V_T}")
    a(f"v_lshrrev_b32 v{V_T}, 5, v{V_LANE}")
    a(f"v_lshlrev_b32 v{V_T}, 3, v{V_T}")
    a(f"v_lshrrev_b32 v{V_T+1}, 2, v{V_LANE}")
    a(f"v_and_b32 v{V_T+1}, 3, v{V_T+1}")
    a(f"v_add_u32 v{V_T}, v{V_T}, v{V_T+1}")
    a(f"v_mul_u32_u24 v{V_T}, {ROWB}, v{V_T}")
    a(f"v_add_u32 v{V_T}, {A_BYTES}, v{V_T}")
    a(f"v_and_b32 v{V_T+2}, 1, v{V_LANE}")
    a(f"v_lshl_add_u32 v{V_T}, v{V_T+2}, 3, v{V_T}")
    if CPR == 16:
        a(f"v_lshlrev_b32 v{V_T+1}, 2, v{V_T+1}")
    else:
        a(f"v_lshrrev_b32 v{V_T+1}, 1, v{V_T+1}")
        a(f"v_lshlrev_b32 v{V_T+1}, 2, v{V_T+1}")
    a(f"v_lshrrev_b32 v{V_T+2}, 4, v{V_LANE}")
    a(f"v_and_b32 v{V_T+2}, 1, v{V_T+2}")
    a(f"v_lshlrev_b32 v{V_T+2}, 1, v{V_T+2}")
    a(f"v_lshrrev_b32 v{V_T+3}, 1, v{V_LANE}")
    a(f"v_and_b32 v{V_T+3}, 1, v{V_T+3}")
    a(f"v_add_u32 v{V_T+2}, v{V_T+2}, v{V_T+3}")
    a(f"s_lshr_b32 s{S_T1}, s{S_T1}, 3")
    a(f"v_add_u32 v{V_T+2}, s{S_T1}, v{V_T+2}")
    for nb in range(NB):
        a(f"v_add_u32 v{V_T+3}, {4*nb}, v{V_T+2}")
        a(f"v_xor_b32 v{V_T+3}, v{V_T+3}, v{V_T+1}")
        a(f"v_lshl_add_u32 v{V_BADDR+nb}, v{V_T+3}, 4, v{V_T}")
    for r in range(nacc):
        a(f"v_mov_b32 v{V_ACC+r}, 0")

    npro = min(dist, NC)
    for c in range(npro):
        issue_dma(c % stages)

    def set_addr(stage, which):
        base = V_ACUR if which == 0 else None
    cur_stage_regs = {}

    def calc_addr(stage):
        for ks in range(NKS):
            a(f"v_add_u32 v{V_ACUR+ks}, {stage*ST_BYTES}, v{V_AADDR+ks}")
        for nb in range(NB):
            a(f"v_add_u32 v{V_BCUR+nb}, {stage*ST_BYTES}, v{V_BADDR+nb}")

    nreads = MB + 2 * NB
    def reads(ks, st):
        for mb in range(MB):
            r = V_AF + (st * MB + mb) * 4
            a(f"ds_read_b128 v[{r}:{r+3}], v{V_ACUR+ks} offset:{mb*32*AROW}")
        for nb in range(NB):
            r = V_BF + (st * NB + nb) * 4
            for u in range(2):
                a(f"ds_read_b64_tr_b16 v[{r+2*u}:{r+2*u+1}], v{V_BCUR+nb} offset:{(16*ks+4*u)*ROWB}")
    def mfmas(st):
        for nb in range(NB):
            for mb in range(MB):
                acc = V_ACC + (nb * MB + mb) * 16
                ra = V_BF + (st * NB + nb) * 4
                rb = V_AF + (st * MB + mb) * 4
                a(f"v_mfma_f32_32x32x16_bf16 v[{acc}:{acc+15}], v[{ra}:{ra+3}], v[{rb}:{rb+3}], v[{acc}:{acc+15}]")

    a(f"s_waitcnt vmcnt({NDMA*(npro-1)})")
    a("s_barrier")
    calc_addr(0)
    reads(0, 0)

    def outstanding_after_wait(c):
        issued = min(c + dist, NC)
        return NDMA * max(0, issued - (c + 2))

    def chunk(c_stage, c_is_last, issue, vmw, st0):
        st = st0
        nxt = (c_stage + 1) % stages
        if not c_is_last:
            a(f"s_waitcnt vmcnt({vmw})")
            a("s_barrier")
            if issue:
                issue_dma((c_stage + dist) % stages)
        for ks in range(NKS):
            if ks + 1 < NKS:
                reads(ks + 1, st ^ 1)
                a(f"s_waitcnt lgkmcnt({nreads})")
            elif not c_is_last:
                calc_addr(nxt)
                reads(0, st ^ 1)
                a(f"s_waitcnt lgkmcnt({nreads})")
            else:
                a("s_waitcnt lgkmcnt(0)")
            mfmas(st)
            st ^= 1
        return st

    if NC <= 12:
        st = 0
        for c in range(NC):
            st = chunk(c % stages, c == NC - 1, c + dist < NC, outstanding_after_wait(c), st)
    else:
        assert NKS % 2 == 0
        n_issue = NC - dist
        ngroups = n_issue // stages
        a(f"s_mov_b32 s{S_CNT}, {ngroups}")
        a.label(f"{name}_loop")
        st = 0
        for s in range(stages):
            st = chunk(s, False, True, NDMA * (dist - 2), st)
        assert st == 0
        a(f"s_sub_u32 s{S_CNT}, s{S_CNT}, 1")
        a(f"s_cmp_lg_u32 s{S_CNT}, 0")
        a(f"s_cbranch_scc1 {name}_loop")
        for c in range(ngroups * stages, NC):
            st = chunk(c % stages, c == NC - 1, c + dist < NC, outstanding_after_wait(c), st)

    a("s_nop 7"); a("s_nop 7")
    a(f"s_lshr_b32 s{S_T0}, s{S_WAVE}, {lw}")
    a(f"s_and_b32 s{S_T1}, s{S_WAVE}, {WNn-1}")
    a(f"s_mul_i32 s{S_T0}, s{S_T0}, {WM}")
    a(f"s_mul_i32 s{S_T1}, s{S_T1}, {WN*2}")
    a(f"v_and_b32 v{V_T}, 31, v{V_LANE}")
    a(f"v_add_u32 v{V_T}, s{S_T0}, v{V_T}")
    a(f"s_mov_b32 s{S_T2}, {ldc}")
    a(f"v_mul_lo_u32 v{V_OFFC}, v{V_T}, s{S_T2}")
    a(f"v_lshrrev_b32 v{V_T}, 5, v{V_LANE}")
    a(f"v_lshl_add_u32 v{V_OFFC}, v{V_T}, 3, v{V_OFFC}")
    a(f"v_add_u32 v{V_OFFC}, s{S_T1}, v{V_OFFC}")
    for mb in range(MB):
        a(f"s_add_u32 s{S_T0}, s{S_M0T}, {32*mb}")
        a(f"s_mul_i32 s{S_COFF+mb}, s{S_T0}, {ldc}")
        a(f"s_lshl_b32 s{S_T0}, s{S_N0T}, 1")
        a(f"s_add_u32 s{S_COFF+mb}, s{S_COFF+mb}, s{S_T0}")
    k = 0
    for nb in range(NB):
        for mb in range(MB):
            acc = V_ACC + (nb * MB + mb) * 16
            for g in range(4):
                t = V_AF + 2 * (k % 8); k += 1
                a(f"v_cvt_pk_bf16_f32 v{t}, v{acc+4*g}, v{acc+4*g+1}")
                a(f"v_cvt_pk_bf16_f32 v{t+1}, v{acc+4*g+2}, v{acc+4*g+3}")
                a(f"buffer_store_dwordx2 v[{t}:{t+1}], v{V_OFFC}, s[{SRD_C}:{SRD_C+3}], s{S_COFF+mb} offen offset:{(nb*32+8*g)*2}")
    a.label(f"{name}_done")
    a("s_endpgm")
    return a.text(), V_END, lds_total, ntiles


def gen_gemm_ks(name, M, N, K, TN, a_src, b_src, c_dst, lda, ldb, ldc, stages):
    TM = 64
    assert TN == 64
    KC = 64
    NC = K // KC
    assert K % KC == 0
    NB, MB = 2, 2
    AROW = 128
    A_BYTES = TM * AROW
    ROWB = 128
    B_BYTES = KC * ROWB
    ST_BYTES = A_BYTES + B_BYTES
    nAw, nBw = 2, 2
    NDMA = 4
    NTM, NTN = M // TM, N // TN
    ntiles = NTM * NTN
    lds_total = stages * ST_BYTES
    assert lds_total >= 65536
    a = Asm()
    SRD_A, SRD_B, SRD_C = 4, 8, 12
    S_M0T, S_N0T, S_WAVE = 16, 17, 18
    S_OFFA, S_OFFB = 20, 21
    S_T0, S_T1, S_T2 = 22, 23, 24
    S_CNT = 25
    S_LDSA, S_LDSB = 26, 27
    S_COFF = 28
    V_LANE = 1
    V_OFFA0, V_OFFA1, V_OFFB = 2, 3, 4
    V_OFFC = 5
    V_T = 6
    V_AAD = 10
    V_BAD = 11
    V_AF = 16
    V_BF = 24
    V_ACC = 32
    V_RED = 96
    V_END = 100

    a(f"s_cmp_ge_u32 s2, {ntiles}")
    a(f"s_cbranch_scc1 {name}_done")
    a(f"s_load_dwordx2 s[{SRD_A}:{SRD_A+1}], s[0:1], {a_src[0]}")
    a(f"s_load_dwordx2 s[{SRD_B}:{SRD_B+1}], s[0:1], {b_src[0]}")
    a(f"s_load_dwordx2 s[{SRD_C}:{SRD_C+1}], s[0:1], {c_dst[0]}")
    a(f"s_and_b32 s{S_M0T}, s2, {NTM-1}")
    a(f"s_lshr_b32 s{S_N0T}, s2, {NTM.bit_length()-1}")
    a(f"s_mul_i32 s{S_M0T}, s{S_M0T}, {TM}")
    a(f"s_mul_i32 s{S_N0T}, s{S_N0T}, {TN}")
    a(f"v_lshrrev_b32 v{V_T}, 6, v0")
    a(f"v_and_b32 v{V_LANE}, 63, v0")
    a("s_nop 0")
    a(f"v_readfirstlane_b32 s{S_WAVE}, v{V_T}")
    a("s_waitcnt lgkmcnt(0)")
    for sd, src in ((SRD_A, a_src), (SRD_B, b_src), (SRD_C, c_dst)):
        if src[1]:
            a(f"s_add_u32 s{sd}, s{sd}, {src[1]}")
            a(f"s_addc_u32 s{sd+1}, s{sd+1}, 0")
        a(f"s_and_b32 s{sd+1}, s{sd+1}, 0xffff")
        a(f"s_mov_b32 s{sd+2}, {src[2]}")
        a(f"s_mov_b32 s{sd+3}, 0x00020000")
    a(f"v_lshrrev_b32 v{V_T}, 3, v{V_LANE}")
    a(f"s_mov_b32 s{S_T0}, {lda}")
    a(f"v_mul_lo_u32 v{V_OFFA0}, v{V_T}, s{S_T0}")
    a(f"v_and_b32 v{V_T}, 7, v{V_LANE}")
    a(f"v_lshrrev_b32 v{V_T+1}, 4, v{V_LANE}")
    a(f"v_xor_b32 v{V_T}, v{V_T}, v{V_T+1}")
    a(f"v_lshlrev_b32 v{V_T+1}, 4, v{V_T}")
    a(f"v_add_u32 v{V_OFFA1}, v{V_OFFA0}, v{V_T+1}")
    a(f"v_xor_b32 v{V_T+1}, 64, v{V_T+1}")
    a(f"v_add_u32 v{V_T+2}, v{V_OFFA0}, v{V_T+1}")
    a(f"v_mov_b32 v{V_OFFA0}, v{V_OFFA1}")
    a(f"v_mov_b32 v{V_OFFA1}, v{V_T+2}")
    a(f"v_lshrrev_b32 v{V_T}, 3, v{V_LANE}")
    a(f"v_lshrrev_b32 v{V_T+1}, 4, v{V_LANE}")
    a(f"v_and_b32 v{V_T+1}, 1, v{V_T+1}")
    a(f"v_lshlrev_b32 v{V_T+1}, 2, v{V_T+1}")
    a(f"v_and_b32 v{V_T+2}, 7, v{V_LANE}")
    a(f"v_xor_b32 v{V_T+1}, v{V_T+1}, v{V_T+2}")
    a(f"s_mov_b32 s{S_T0}, {ldb}")
    a(f"v_mul_lo_u32 v{V_OFFB}, v{V_T}, s{S_T0}")
    a(f"v_lshlrev_b32 v{V_T+1}, 4, v{V_T+1}")
    a(f"v_add_u32 v{V_OFFB}, v{V_OFFB}, v{V_T+1}")
    a(f"s_mul_i32 s{S_T0}, s{S_WAVE}, {8*nAw}")
    a(f"s_add_u32 s{S_T0}, s{S_T0}, s{S_M0T}")
    a(f"s_mul_i32 s{S_OFFA}, s{S_T0}, {lda}")
    a(f"s_mul_i32 s{S_OFFB}, s{S_WAVE}, {8*nBw*ldb}")
    a(f"s_lshl_b32 s{S_T0}, s{S_N0T}, 1")
    a(f"s_add_u32 s{S_OFFB}, s{S_OFFB}, s{S_T0}")
    a(f"s_mul_i32 s{S_LDSA}, s{S_WAVE}, {nAw*1024}")
    a(f"s_mul_i32 s{S_LDSB}, s{S_WAVE}, {nBw*1024}")
    a(f"s_add_u32 s{S_LDSB}, s{S_LDSB}, {A_BYTES}")

    def issue_dma(stage):
        for j in range(nAw):
            a(f"s_add_u32 s{S_T0}, s{S_LDSA}, {stage*ST_BYTES + j*1024}")
            a(f"s_mov_b32 m0, s{S_T0}")
            a(f"s_add_u32 s{S_T1}, s{S_OFFA}, {8*j*lda}")
            vo = V_OFFA0 if j % 2 == 0 else V_OFFA1
            a(f"buffer_load_dwordx4 v{vo}, s[{SRD_A}:{SRD_A+3}], s{S_T1} offen lds")
        for j in range(nBw):
            a(f"s_add_u32 s{S_T0}, s{S_LDSB}, {stage*ST_BYTES + j*1024}")
            a(f"s_mov_b32 m0, s{S_T0}")
            a(f"s_add_u32 s{S_T1}, s{S_OFFB}, {8*j*ldb}")
            a(f"buffer_load_dwordx4 v{V_OFFB}, s[{SRD_B}:{SRD_B+3}], s{S_T1} offen lds")
        a(f"s_add_u32 s{S_OFFA}, s{S_OFFA}, {KC*2}")
        a(f"s_add_u32 s{S_OFFB}, s{S_OFFB}, {KC*ldb}")

    a(f"v_and_b32 v{V_T}, 31, v{V_LANE}")
    a(f"v_lshlrev_b32 v{V_T}, 7, v{V_T}")
    a(f"v_lshrrev_b32 v{V_T+1}, 5, v{V_LANE}")
    a(f"v_lshrrev_b32 v{V_T+2}, 1, v{V_LANE}")
    a(f"v_and_b32 v{V_T+2}, 7, v{V_T+2}")
    a(f"v_xor_b32 v{V_T+1}, v{V_T+1}, v{V_T+2}")
    a(f"s_lshl_b32 s{S_T2}, s{S_WAVE}, 1")
    a(f"v_xor_b32 v{V_T+2}, s{S_T2}, v{V_T+1}")
    a(f"v_lshl_add_u32 v{V_AAD}, v{V_T+2}, 4, v{V_T}")
    a(f"v_lshrrev_b32 v{V_T}, 5, v{V_LANE}")
    a(f"v_lshlrev_b32 v{V_T}, 3, v{V_T}")
    a(f"v_lshrrev_b32 v{V_T+1}, 2, v{V_LANE}")
    a(f"v_and_b32 v{V_T+1}, 3, v{V_T+1}")
    a(f"v_add_u32 v{V_T}, v{V_T}, v{V_T+1}")
    a(f"s_lshl_b32 s{S_T2}, s{S_WAVE}, 4")
    a(f"v_add_u32 v{V_T}, s{S_T2}, v{V_T}")
    a(f"v_lshlrev_b32 v{V_T}, 7, v{V_T}")
    a(f"v_add_u32 v{V_T}, {A_BYTES}, v{V_T}")
    a(f"v_and_b32 v{V_T+2}, 1, v{V_LANE}")
    a(f"v_lshl_add_u32 v{V_T}, v{V_T+2}, 3, v{V_T}")
    a(f"v_lshrrev_b32 v{V_T+1}, 1, v{V_T+1}")
    a(f"v_lshlrev_b32 v{V_T+1}, 2, v{V_T+1}")
    a(f"v_lshrrev_b32 v{V_T+2}, 4, v{V_LANE}")
    a(f"v_and_b32 v{V_T+2}, 1, v{V_T+2}")
    a(f"v_lshlrev_b32 v{V_T+2}, 1, v{V_T+2}")
    a(f"v_lshrrev_b32 v{V_T+3}, 1, v{V_LANE}")
    a(f"v_and_b32 v{V_T+3}, 1, v{V_T+3}")
    a(f"v_add_u32 v{V_T+2}, v{V_T+2}, v{V_T+3}")
    for nb in range(NB):
        a(f"v_add_u32 v{V_T+3}, {4*nb}, v{V_T+2}")
        a(f"v_xor_b32 v{V_T+3}, v{V_T+3}, v{V_T+1}")
        a(f"v_lshl_add_u32 v{V_BAD+nb}, v{V_T+3}, 4, v{V_T}")
    for r in range(64):
        a(f"v_mov_b32 v{V_ACC+r}, 0")

    dist = stages - 1
    for c in range(dist):
        issue_dma(c % stages)

    def outstanding(c):
        issued = min(c + dist, NC)
        return NDMA * max(0, issued - (c + 1))
    def step(c, issue, vmw):
        a(f"s_waitcnt vmcnt({vmw})")
        a("s_barrier")
        if issue:
            issue_dma((c + dist) % stages)
        stage = c % stages
        a(f"v_add_u32 v{V_T}, {stage*ST_BYTES}, v{V_AAD}")
        for mb in range(MB):
            r = V_AF + mb*4
            a(f"ds_read_b128 v[{r}:{r+3}], v{V_T} offset:{mb*4096}")
        for nb in range(NB):
            a(f"v_add_u32 v{V_T+1+nb}, {stage*ST_BYTES}, v{V_BAD+nb}")
            for u in range(2):
                r = V_BF + nb*4 + 2*u
                a(f"ds_read_b64_tr_b16 v[{r}:{r+1}], v{V_T+1+nb} offset:{4*u*ROWB}")
        a("s_waitcnt lgkmcnt(0)")
        for nb in range(NB):
            for mb in range(MB):
                acc = V_ACC + (nb*MB+mb)*16
                ra = V_BF + nb*4
                rb = V_AF + mb*4
                a(f"v_mfma_f32_32x32x16_bf16 v[{acc}:{acc+15}], v[{ra}:{ra+3}], v[{rb}:{rb+3}], v[{acc}:{acc+15}]")

    n_issue = NC - dist
    ngroups = n_issue // stages
    a(f"s_mov_b32 s{S_CNT}, {ngroups}")
    a.label(f"{name}_loop")
    for s_ in range(stages):
        step(s_, True, NDMA * (dist - 1))
    a(f"s_sub_u32 s{S_CNT}, s{S_CNT}, 1")
    a(f"s_cmp_lg_u32 s{S_CNT}, 0")
    a(f"s_cbranch_scc1 {name}_loop")
    for c in range(ngroups * stages, NC):
        step(c, c + dist < NC, outstanding(c))

    a("s_nop 7"); a("s_nop 7")
    a("s_barrier")
    a(f"v_lshlrev_b32 v{V_T}, 2, v{V_LANE}")
    a(f"s_lshl_b32 s{S_T0}, s{S_WAVE}, 14")
    a(f"v_add_u32 v{V_T}, s{S_T0}, v{V_T}")
    for r in range(64):
        a(f"ds_write_b32 v{V_T}, v{V_ACC+r} offset:{256*r}")
    a("s_waitcnt lgkmcnt(0)")
    a("s_barrier")
    a(f"v_lshlrev_b32 v{V_T+1}, 2, v{V_LANE}")
    a(f"s_mul_i32 s{S_T0}, s{S_WAVE}, {16*256}")
    a(f"v_add_u32 v{V_T+1}, s{S_T0}, v{V_T+1}")
    for r in range(16):
        for p in range(4):
            a(f"ds_read_b32 v{V_RED+p}, v{V_T+1} offset:{p*16384 + 256*r}")
        a("s_waitcnt lgkmcnt(0)")
        a(f"v_add_f32 v{V_RED}, v{V_RED}, v{V_RED+1}")
        a(f"v_add_f32 v{V_RED+2}, v{V_RED+2}, v{V_RED+3}")
        a(f"v_add_f32 v{V_ACC+r}, v{V_RED}, v{V_RED+2}")
    a(f"v_and_b32 v{V_T}, 31, v{V_LANE}")
    a(f"s_mov_b32 s{S_T2}, {ldc}")
    a(f"v_mul_lo_u32 v{V_OFFC}, v{V_T}, s{S_T2}")
    a(f"v_lshrrev_b32 v{V_T}, 5, v{V_LANE}")
    a(f"v_lshl_add_u32 v{V_OFFC}, v{V_T}, 3, v{V_OFFC}")
    a(f"s_and_b32 s{S_T1}, s{S_WAVE}, 1")
    a(f"s_lshr_b32 s{S_T0}, s{S_WAVE}, 1")
    a(f"s_mul_i32 s{S_COFF}, s{S_T1}, {32*ldc}")
    a(f"s_mul_i32 s{S_T0}, s{S_T0}, {64}")
    a(f"s_add_u32 s{S_COFF}, s{S_COFF}, s{S_T0}")
    a(f"s_mul_i32 s{S_T0}, s{S_M0T}, {ldc}")
    a(f"s_add_u32 s{S_COFF}, s{S_COFF}, s{S_T0}")
    a(f"s_lshl_b32 s{S_T0}, s{S_N0T}, 1")
    a(f"s_add_u32 s{S_COFF}, s{S_COFF}, s{S_T0}")
    for g in range(4):
        t = V_BF + 2*g
        a(f"v_cvt_pk_bf16_f32 v{t}, v{V_ACC+4*g}, v{V_ACC+4*g+1}")
        a(f"v_cvt_pk_bf16_f32 v{t+1}, v{V_ACC+4*g+2}, v{V_ACC+4*g+3}")
        a(f"buffer_store_dwordx2 v[{t}:{t+1}], v{V_OFFC}, s[{SRD_C}:{SRD_C+3}], s{S_COFF} offen offset:{16*g}")
    a.label(f"{name}_done")
    a("s_endpgm")
    return a.text(), V_END, lds_total, ntiles
```

```python
from gen_common import *

SCALE_LOG2E = (128 ** -0.5) * 1.4426950408889634

def f32hex(x):
    import struct
    return "0x%08x" % struct.unpack("<I", struct.pack("<f", x))[0]

OLD = 8192 + 128
def gen_attn(name, nocompute=False, nodma=False, nt=False, rot=False):
    NS, DIST = 4, 3
    SLOT = 32768
    NQ, NKV = 9, 16
    NSEQ = NQ + NKV
    QX = 131072
    a = Asm()
    SRD_K, SRD_V, SRD_X, SRD_W, SRD_O = 4, 8, 12, 16, 36
    S_WAVE, S_QB, S_G = 21, 22, 23
    S_KVOFF = 24
    S_T0, S_T1, S_T2 = 25, 26, 27
    S_C = 28
    S_LDSW = 30
    S_OOFF = 31
    S_THR = 32
    S_XOFF, S_WOFF = 33, 34
    V_LANE = 1
    V_KOFF0, V_KOFF1, V_VOFF = 2, 3, 4
    V_KAD = 5
    V_VAD = 13
    V_KC = 17
    V_VC = 25
    V_M, V_L, V_ALPHA = 29, 30, 31
    V_T = 32
    V_P = 40
    V_Q = 48
    V_S = 80
    V_KF = 96
    V_VF = 128
    V_O = 160
    V_XOFF0, V_XOFF1, V_WOFF = 224, 225, 226
    V_XAD = 227
    V_END = 232

    a(f"s_cmp_ge_u32 s2, 256")
    a(f"s_cbranch_scc1 {name}_done")
    import os
    TS = os.environ.get("TS")
    def stamp(i):
        if TS:
            a(f"s_memtime s[{40+2*i}:{41+2*i}]")
            a("s_waitcnt lgkmcnt(0)")
    stamp(0)
    a(f"s_load_dwordx2 s[{SRD_K}:{SRD_K+1}], s[0:1], {KA_K}")
    a(f"s_load_dwordx2 s[{SRD_V}:{SRD_V+1}], s[0:1], {KA_V}")
    a(f"s_load_dwordx2 s[{SRD_X}:{SRD_X+1}], s[0:1], {KA_X}")
    a(f"s_load_dwordx2 s[{SRD_W}:{SRD_W+1}], s[0:1], {KA_WQ}")
    a(f"s_load_dwordx2 s[{SRD_O}:{SRD_O+1}], s[0:1], {KA_WS}")
    a(f"v_lshrrev_b32 v{V_T}, 6, v0")
    a(f"v_and_b32 v{V_LANE}, 63, v0")
    a("s_nop 0")
    a(f"v_readfirstlane_b32 s{S_WAVE}, v{V_T}")
    a("s_waitcnt lgkmcnt(0)")
    for sd, nbytes, add in ((SRD_K, 8*32*1024*128*2, 0), (SRD_V, 8*32*1024*128*2, 0), (SRD_X, 1024*576*2, 0),
                            (SRD_W, 576*4096*2, 0), (SRD_O, 1024*OLD, 8*1024*1024)):
        if add:
            a(f"s_add_u32 s{sd}, s{sd}, {add}")
            a(f"s_addc_u32 s{sd+1}, s{sd+1}, 0")
        a(f"s_and_b32 s{sd+1}, s{sd+1}, 0xffff")
        a(f"s_mov_b32 s{sd+2}, {nbytes}")
        a(f"s_mov_b32 s{sd+3}, 0x00020000")
    a(f"s_and_b32 s{S_QB}, s{S_WAVE}, 3")
    a(f"s_lshr_b32 s{S_G}, s{S_WAVE}, 2")
    a(f"s_mov_b32 s{S_C}, {f32hex(SCALE_LOG2E)}")
    a(f"s_mov_b32 s{S_THR}, 0x41000000")
    a(f"s_lshl_b32 s{S_LDSW}, s{S_WAVE}, 11")
    a(f"s_lshl_b32 s{S_KVOFF}, s2, 18")
    a(f"s_add_u32 s{S_KVOFF}, s{S_KVOFF}, s{S_LDSW}")
    a(f"s_lshr_b32 s{S_T0}, s2, 5")
    a(f"s_lshl_b32 s{S_T0}, s{S_T0}, 7")
    a(f"s_lshl_b32 s{S_T1}, s{S_WAVE}, 4")
    a(f"s_add_u32 s{S_T0}, s{S_T0}, s{S_T1}")
    a(f"s_mul_i32 s{S_XOFF}, s{S_T0}, 1152")
    a(f"s_lshl_b32 s{S_WOFF}, s{S_WAVE}, 16")
    a(f"s_and_b32 s{S_T1}, s2, 31")
    a(f"s_lshl_b32 s{S_T1}, s{S_T1}, 8")
    a(f"s_add_u32 s{S_WOFF}, s{S_WOFF}, s{S_T1}")
    a(f"v_lshrrev_b32 v{V_T}, 4, v{V_LANE}")
    a(f"v_and_b32 v{V_T+1}, 15, v{V_LANE}")
    a(f"s_and_b32 s{S_T0}, s{S_WAVE}, 1")
    a(f"s_lshl_b32 s{S_T0}, s{S_T0}, 3")
    a(f"v_add_u32 v{V_T+2}, s{S_T0}, v{V_T}")
    a(f"v_xor_b32 v{V_T+3}, v{V_T+1}, v{V_T+2}")
    a(f"v_lshlrev_b32 v{V_T+3}, 4, v{V_T+3}")
    a(f"v_lshl_add_u32 v{V_KOFF0}, v{V_T}, 8, v{V_T+3}")
    a(f"v_add_u32 v{V_T+2}, 4, v{V_T+2}")
    a(f"v_xor_b32 v{V_T+3}, v{V_T+1}, v{V_T+2}")
    a(f"v_lshlrev_b32 v{V_T+3}, 4, v{V_T+3}")
    a(f"v_lshl_add_u32 v{V_KOFF1}, v{V_T}, 8, v{V_T+3}")
    a(f"v_lshlrev_b32 v{V_T+2}, 2, v{V_T}")
    a(f"v_xor_b32 v{V_T+3}, v{V_T+1}, v{V_T+2}")
    a(f"v_lshlrev_b32 v{V_T+3}, 4, v{V_T+3}")
    a(f"v_lshl_add_u32 v{V_VOFF}, v{V_T}, 8, v{V_T+3}")
    a(f"v_lshl_add_u32 v{V_WOFF}, v{V_T}, 13, v{V_T+3}")
    a(f"v_lshrrev_b32 v{V_T}, 3, v{V_LANE}")
    a(f"v_mul_u32_u24 v{V_T}, 1152, v{V_T}")
    a(f"v_and_b32 v{V_T+1}, 7, v{V_LANE}")
    a(f"v_lshrrev_b32 v{V_T+2}, 4, v{V_LANE}")
    a(f"v_xor_b32 v{V_T+1}, v{V_T+1}, v{V_T+2}")
    a(f"v_lshl_add_u32 v{V_XOFF0}, v{V_T+1}, 4, v{V_T}")
    a(f"v_xor_b32 v{V_T+1}, 4, v{V_T+1}")
    a(f"v_lshl_add_u32 v{V_XOFF1}, v{V_T+1}, 4, v{V_T}")

    def issue(seq):
        if nodma: return
        base = (seq % NS) * SLOT
        if seq < NQ:
            parts = ((0, SRD_X, S_XOFF, (V_XOFF0, V_XOFF1), 8 * 1152), (16384, SRD_W, S_WOFF, (V_WOFF, V_WOFF), 4 * 8192))
        else:
            parts = ((0, SRD_K, S_KVOFF, (V_KOFF0, V_KOFF1), 1024), (16384, SRD_V, S_KVOFF, (V_VOFF, V_VOFF), 1024))
        for part, srd, soff, voffs, jstride in parts:
            for j in range(2):
                a(f"s_add_u32 s{S_T0}, s{S_LDSW}, {base + part + j*1024}")
                a(f"s_mov_b32 m0, s{S_T0}")
                a(f"s_add_u32 s{S_T1}, s{soff}, {j*jstride}")
                a(f"buffer_load_dwordx4 v{voffs[j]}, s[{srd}:{srd+3}], s{S_T1} offen" + (" nt" if (nt and seq >= NQ) else "") + " lds")
        if seq < NQ:
            a(f"s_add_u32 s{S_XOFF}, s{S_XOFF}, 128")
            a(f"s_add_u32 s{S_WOFF}, s{S_WOFF}, {64*8192}")
        else:
            a(f"s_add_u32 s{S_KVOFF}, s{S_KVOFF}, {64*256}")

    for s_ in range(DIST):
        issue(s_)
    PF = int(os.environ.get("PF", "0"))
    if PF and not nodma:
        a(f"s_lshr_b32 s{S_T0}, s{S_WAVE}, 1")
        a(f"s_and_b32 s{S_T0}, s{S_T0}, 1")
        a(f"s_cmp_eq_u32 s{S_T0}, 0")
        for i in range(4):
            a(f"s_cselect_b32 s{44+i}, s{SRD_K+i}, s{SRD_V+i}")
        a(f"s_lshl_b32 s{S_T1}, s2, 18")
        a(f"s_lshl_b32 s{S_T2}, s{S_G}, 14")
        a(f"s_add_u32 s{S_T1}, s{S_T1}, s{S_T2}")
        a(f"s_and_b32 s{S_T2}, s{S_WAVE}, 1")
        a(f"s_lshl_b32 s{S_T2}, s{S_T2}, 13")
        a(f"s_add_u32 s{S_T1}, s{S_T1}, s{S_T2}")
        a(f"v_lshlrev_b32 v{V_T}, 7, v{V_LANE}")
        for r in range(PF):
            a(f"buffer_load_dword v{V_END+r}, v{V_T}, s[44:47], s{S_T1} offen offset:0")
            a(f"s_add_u32 s{S_T1}, s{S_T1}, 32768")

    a(f"s_lshl_b32 s{S_T0}, s{S_G}, 5")
    a(f"v_and_b32 v{V_T}, 31, v{V_LANE}")
    a(f"v_add_u32 v{V_T}, s{S_T0}, v{V_T}")
    a(f"v_lshlrev_b32 v{V_T}, 8, v{V_T}")
    a(f"v_lshrrev_b32 v{V_T+1}, 5, v{V_LANE}")
    a(f"v_and_b32 v{V_T+2}, 15, v{V_LANE}")
    a(f"v_xor_b32 v{V_T+1}, v{V_T+1}, v{V_T+2}")
    for ks in range(8):
        a(f"v_xor_b32 v{V_T+2}, {2*ks}, v{V_T+1}")
        a(f"v_lshl_add_u32 v{V_KAD+ks}, v{V_T+2}, 4, v{V_T}")
    a(f"v_lshrrev_b32 v{V_T+4}, 5, v{V_LANE}")
    a(f"v_lshrrev_b32 v{V_T+1}, 2, v{V_LANE}")
    a(f"v_and_b32 v{V_T+1}, 3, v{V_T+1}")
    a(f"v_lshlrev_b32 v{V_T}, 2, v{V_T+4}")
    a(f"v_add_u32 v{V_T}, v{V_T}, v{V_T+1}")
    a(f"v_add_u32 v{V_T}, s{S_T0}, v{V_T}")
    a(f"v_lshlrev_b32 v{V_T}, 8, v{V_T}")
    a(f"v_add_u32 v{V_T}, 16384, v{V_T}")
    a(f"v_and_b32 v{V_T+2}, 1, v{V_LANE}")
    a(f"v_lshl_add_u32 v{V_T}, v{V_T+2}, 3, v{V_T}")
    a(f"v_lshlrev_b32 v{V_T+5}, 3, v{V_T+4}")
    a(f"v_add_u32 v{V_T+5}, v{V_T+5}, v{V_T+1}")
    a(f"v_lshlrev_b32 v{V_T+5}, 8, v{V_T+5}")
    a(f"v_add_u32 v{V_T+5}, 16384, v{V_T+5}")
    a(f"v_lshl_add_u32 v{V_T+5}, v{V_T+2}, 3, v{V_T+5}")
    a(f"v_lshlrev_b32 v{V_T+1}, 2, v{V_T+1}")
    a(f"v_lshrrev_b32 v{V_T+2}, 4, v{V_LANE}")
    a(f"v_and_b32 v{V_T+2}, 1, v{V_T+2}")
    a(f"v_lshlrev_b32 v{V_T+2}, 1, v{V_T+2}")
    a(f"v_lshrrev_b32 v{V_T+3}, 1, v{V_LANE}")
    a(f"v_and_b32 v{V_T+3}, 1, v{V_T+3}")
    a(f"v_add_u32 v{V_T+2}, v{V_T+2}, v{V_T+3}")
    for db in range(4):
        a(f"v_add_u32 v{V_T+3}, {4*db}, v{V_T+2}")
        a(f"v_xor_b32 v{V_T+3}, v{V_T+3}, v{V_T+1}")
        a(f"v_lshl_add_u32 v{V_VAD+db}, v{V_T+3}, 4, v{V_T}")
    a(f"s_lshl_b32 s{S_T1}, s{S_G}, 3")
    for i in range(2):
        a(f"v_add_u32 v{V_T+3}, s{S_T1}, v{V_T+2}")
        if i: a(f"v_add_u32 v{V_T+3}, 4, v{V_T+3}")
        a(f"v_xor_b32 v{V_T+3}, v{V_T+3}, v{V_T+1}")
        a(f"v_lshl_add_u32 v{V_P+i}, v{V_T+3}, 4, v{V_T+5}")
        a(f"v_add_u32 v{V_P+2+i}, 65536, v{V_P+i}")
    a(f"s_lshl_b32 s{S_T1}, s{S_QB}, 5")
    a(f"v_and_b32 v{V_T}, 31, v{V_LANE}")
    a(f"v_add_u32 v{V_T}, s{S_T1}, v{V_T}")
    a(f"v_lshlrev_b32 v{V_T}, 7, v{V_T}")
    a(f"v_lshrrev_b32 v{V_T+1}, 1, v{V_LANE}")
    a(f"v_and_b32 v{V_T+1}, 7, v{V_T+1}")
    a(f"v_xor_b32 v{V_T+1}, v{V_T+1}, v{V_T+4}")
    for ks in range(4):
        a(f"v_xor_b32 v{V_T+2}, {2*ks}, v{V_T+1}")
        a(f"v_lshl_add_u32 v{V_XAD+ks}, v{V_T+2}, 4, v{V_T}")
        a(f"v_add_u32 v{V_P+4+ks}, 65536, v{V_XAD+ks}")
    for ks in range(8):
        a(f"v_add_u32 v{V_KC+ks}, 65536, v{V_KAD+ks}")
    for db in range(4):
        a(f"v_add_u32 v{V_VC+db}, 65536, v{V_VAD+db}")
    a(f"v_mov_b32 v{V_M}, 0xff800000")
    a(f"v_mov_b32 v{V_L}, 0")
    for r in range(32):
        a(f"v_mov_b32 v{V_O+r}, 0")

    NDMA = 4
    def head(seq):
        a(f"s_waitcnt vmcnt({NDMA*min(DIST-1, NSEQ-1-seq) + (PF if seq < DIST else 0)})")
        a("s_barrier")
        if seq + DIST < NSEQ:
            issue(seq + DIST)

    def qstep(seq):
        head(seq)
        if nocompute: return
        slot = seq % NS
        hi = slot >= 2
        so = (slot % 2) * SLOT
        def qreads(ks):
            xa = (V_P + 4 + ks) if hi else (V_XAD + ks)
            a(f"ds_read_b128 v[{V_KF+4*ks}:{V_KF+4*ks+3}], v{xa} offset:{so}")
            for i in range(2):
                wa = (V_P + 2 + i) if hi else (V_P + i)
                r = V_VF + (ks * 2 + i) * 4
                for u in range(2):
                    a(f"ds_read_b64_tr_b16 v[{r+2*u}:{r+2*u+1}], v{wa} offset:{so+(16*ks+4*u)*256}")
        qreads(0); qreads(1)
        for ks in range(4):
            if ks + 2 < 4:
                qreads(ks + 2)
            a(f"s_waitcnt lgkmcnt({5*min(2, 3-ks)})")
            for i in range(2):
                r = V_VF + (ks * 2 + i) * 4
                o = V_O + 16 * i
                a(f"v_mfma_f32_32x32x16_bf16 v[{o}:{o+15}], v[{r}:{r+3}], v[{V_KF+4*ks}:{V_KF+4*ks+3}], v[{o}:{o+15}]")

    uidc = [0]
    def kvstep(seq):
        uid = uidc[0]; uidc[0] += 1
        head(seq)
        if nocompute: return
        slot = seq % NS
        KA = V_KAD if slot < 2 else V_KC
        VA = V_VAD if slot < 2 else V_VC
        so = (slot % 2) * SLOT
        for ks in range(8):
            a(f"ds_read_b128 v[{V_KF+4*ks}:{V_KF+4*ks+3}], v{KA+ks} offset:{so}")
        for ks in range(8):
            a(f"s_waitcnt lgkmcnt({7-ks})")
            c = "0" if ks == 0 else f"v[{V_S}:{V_S+15}]"
            a(f"v_mfma_f32_32x32x16_bf16 v[{V_S}:{V_S+15}], v[{V_KF+4*ks}:{V_KF+4*ks+3}], v[{V_Q+4*ks}:{V_Q+4*ks+3}], {c}")
        for t in range(2):
            for db in range(4):
                r = V_VF + (t * 4 + db) * 4
                for u in range(2):
                    a(f"ds_read_b64_tr_b16 v[{r+2*u}:{r+2*u+1}], v{VA+db} offset:{so+(16*t+8*u)*256}")
        a("s_nop 7"); a("s_nop 3")
        S = V_S; T = V_T
        a(f"v_max3_f32 v{T}, v{S}, v{S+1}, v{S+2}")
        a(f"v_max3_f32 v{T+1}, v{S+3}, v{S+4}, v{S+5}")
        a(f"v_max3_f32 v{T+2}, v{S+6}, v{S+7}, v{S+8}")
        a(f"v_max3_f32 v{T+3}, v{S+9}, v{S+10}, v{S+11}")
        a(f"v_max3_f32 v{T+4}, v{S+12}, v{S+13}, v{S+14}")
        a(f"v_max3_f32 v{T}, v{T}, v{T+1}, v{T+2}")
        a(f"v_max3_f32 v{T+3}, v{T+3}, v{T+4}, v{S+15}")
        a(f"v_max_f32 v{T}, v{T}, v{T+3}")
        a(f"v_mov_b32 v{T+1}, v{T}")
        a("s_nop 1")
        a(f"v_permlane32_swap_b32 v{T}, v{T+1}")
        a(f"v_max_f32 v{T}, v{T}, v{T+1}")
        a(f"v_mul_f32 v{T}, s{S_C}, v{T}")
        a(f"v_max_f32 v{T+1}, v{V_M}, v{T}")
        a(f"v_sub_f32 v{T+2}, v{T+1}, v{V_M}")
        a(f"v_cmp_gt_f32 vcc, v{T+2}, s{S_THR}")
        a("s_cmp_lg_u64 vcc, 0")
        a(f"s_cbranch_scc0 {name}_skip{uid}")
        a(f"v_sub_f32 v{T+2}, v{V_M}, v{T+1}")
        a(f"v_exp_f32 v{V_ALPHA}, v{T+2}")
        a(f"v_mov_b32 v{V_M}, v{T+1}")
        a(f"v_mul_f32 v{V_L}, v{V_L}, v{V_ALPHA}")
        for r in range(64):
            a(f"v_mul_f32 v{V_O+r}, v{V_O+r}, v{V_ALPHA}")
        a.label(f"{name}_skip{uid}")
        for i in range(16):
            a(f"v_fma_f32 v{S+i}, v{S+i}, s{S_C}, -v{V_M}")
        for i in range(16):
            a(f"v_exp_f32 v{S+i}, v{S+i}")
        for i in range(0, 16, 2):
            a(f"v_add_f32 v{T+2}, v{S+i}, v{S+i+1}")
            a(f"v_add_f32 v{V_L}, v{V_L}, v{T+2}")
        for i in range(8):
            a(f"v_cvt_pk_bf16_f32 v{V_P+i}, v{S+2*i}, v{S+2*i+1}")
        a("s_nop 1")
        n = 0
        for t in range(2):
            for db in range(4):
                r = V_VF + (t * 4 + db) * 4
                a(f"s_waitcnt lgkmcnt({14 - 2*n})"); n += 1
                o = V_O + 16 * db
                a(f"v_mfma_f32_32x32x16_bf16 v[{o}:{o+15}], v[{r}:{r+3}], v[{V_P+4*t}:{V_P+4*t+3}], v[{o}:{o+15}]")

    for seq in range(NQ):
        qstep(seq)
    a("s_nop 7"); a("s_nop 7")
    a(f"s_lshl_b32 s{S_T1}, s{S_QB}, 5")
    a(f"v_and_b32 v{V_T}, 31, v{V_LANE}")
    a(f"v_add_u32 v{V_T}, s{S_T1}, v{V_T}")
    a(f"v_lshlrev_b32 v{V_T}, 8, v{V_T}")
    a(f"v_add_u32 v{V_T}, {QX}, v{V_T}")
    a(f"v_lshrrev_b32 v{V_T+1}, 5, v{V_LANE}")
    a(f"v_lshl_add_u32 v{V_T}, v{V_T+1}, 3, v{V_T}")
    a(f"v_and_b32 v{V_T+1}, 15, v{V_LANE}")
    a(f"s_lshl_b32 s{S_T1}, s{S_G}, 3")
    for i in range(2):
        for gg in range(4):
            o = V_O + 16 * i + 4 * gg
            a(f"v_cvt_pk_bf16_f32 v{V_KF}, v{o}, v{o+1}")
            a(f"v_cvt_pk_bf16_f32 v{V_KF+1}, v{o+2}, v{o+3}")
            a(f"v_add_u32 v{V_T+2}, {4*i+gg}, s{S_T1}") if False else None
            a(f"s_add_u32 s{S_T2}, s{S_T1}, {4*i+gg}")
            a(f"v_xor_b32 v{V_T+2}, s{S_T2}, v{V_T+1}")
            a(f"v_lshl_add_u32 v{V_T+2}, v{V_T+2}, 4, v{V_T}")
            a(f"ds_write_b64 v{V_T+2}, v[{V_KF}:{V_KF+1}]")
    a("s_waitcnt lgkmcnt(0)")
    a("s_barrier")
    a(f"v_lshrrev_b32 v{V_T+2}, 5, v{V_LANE}")
    a(f"v_xor_b32 v{V_T+2}, v{V_T+2}, v{V_T+1}")
    a(f"v_lshrrev_b32 v{V_T+3}, 5, v{V_LANE}")
    a(f"v_lshlrev_b32 v{V_T+3}, 3, v{V_T+3}")
    a(f"v_sub_u32 v{V_T+3}, v{V_T}, v{V_T+3}")
    for ks in range(8):
        a(f"v_xor_b32 v{V_T+4}, {2*ks}, v{V_T+2}")
        a(f"v_lshl_add_u32 v{V_T+4}, v{V_T+4}, 4, v{V_T+3}")
        a(f"ds_read_b128 v[{V_Q+4*ks}:{V_Q+4*ks+3}], v{V_T+4}")
    for r in range(64):
        a(f"v_mov_b32 v{V_O+r}, 0")
    a("s_waitcnt lgkmcnt(0)")

    stamp(1)
    for seq in range(NQ, NSEQ):
        kvstep(seq)
    stamp(2)

    a("s_nop 7"); a("s_nop 7")
    a(f"v_mov_b32 v{V_T}, v{V_L}")
    a("s_nop 1")
    a(f"v_permlane32_swap_b32 v{V_L}, v{V_T}")
    a(f"v_add_f32 v{V_L}, v{V_L}, v{V_T}")
    a("s_barrier")
    a(f"v_lshlrev_b32 v{V_T}, 4, v{V_LANE}")
    a(f"s_lshl_b32 s{S_T0}, s{S_QB}, 14")
    a(f"v_add_u32 v{V_T}, s{S_T0}, v{V_T}")
    a(f"v_lshlrev_b32 v{V_T+6}, 2, v{V_LANE}")
    a(f"s_lshl_b32 s{S_T1}, s{S_QB}, 10")
    a(f"s_add_u32 s{S_T1}, s{S_T1}, 65536")
    a(f"v_add_u32 v{V_T+6}, s{S_T1}, v{V_T+6}")
    a(f"s_cmp_eq_u32 s{S_G}, 0")
    a(f"s_cbranch_scc1 {name}_g0")
    def epi(g):
        oth = V_O + 32 * (1 - g)
        own = V_O + 32 * g
        for i in range(8):
            a(f"ds_write_b128 v{V_T}, v[{oth+4*i}:{oth+4*i+3}] offset:{8192*g + 1024*i}")
        a(f"ds_write_b32 v{V_T+6}, v{V_M} offset:{512*g}")
        a(f"ds_write_b32 v{V_T+6}, v{V_L} offset:{512*g+256}")
        a("s_waitcnt lgkmcnt(0)")
        a("s_barrier")
        M1, L1 = V_T + 1, V_T + 2
        a(f"ds_read_b32 v{M1}, v{V_T+6} offset:{512*(1-g)}")
        a(f"ds_read_b32 v{L1}, v{V_T+6} offset:{512*(1-g)+256}")
        for i in range(8):
            a(f"ds_read_b128 v[{V_KF+4*i}:{V_KF+4*i+3}], v{V_T} offset:{8192*(1-g) + 1024*i}")
        a("s_waitcnt lgkmcnt(8)")
        MN, A0, A1 = V_T + 3, V_T + 4, V_T + 5
        a(f"v_max_f32 v{MN}, v{V_M}, v{M1}")
        a(f"v_sub_f32 v{A0}, v{V_M}, v{MN}")
        a(f"v_sub_f32 v{A1}, v{M1}, v{MN}")
        a(f"v_exp_f32 v{A0}, v{A0}")
        a(f"v_exp_f32 v{A1}, v{A1}")
        a("s_nop 0")
        a(f"v_mul_f32 v{V_L}, v{V_L}, v{A0}")
        a(f"v_fma_f32 v{V_L}, v{L1}, v{A1}, v{V_L}")
        a(f"v_rcp_f32 v{V_L}, v{V_L}")
        a("s_nop 0")
        a(f"v_mul_f32 v{A0}, v{A0}, v{V_L}")
        a(f"v_mul_f32 v{A1}, v{A1}, v{V_L}")
        OX = 98304
        a(f"s_lshl_b32 s{S_T0}, s{S_WAVE}, 12")
        a(f"s_add_u32 s{S_T0}, s{S_T0}, {OX}")
        a(f"v_and_b32 v{V_S+6}, 31, v{V_LANE}")
        a(f"v_lshlrev_b32 v{V_S+6}, 7, v{V_S+6}")
        a(f"v_add_u32 v{V_S+6}, s{S_T0}, v{V_S+6}")
        a(f"v_lshrrev_b32 v{V_S+7}, 5, v{V_LANE}")
        a(f"v_lshl_add_u32 v{V_S}, v{V_S+7}, 3, v{V_S+6}")
        a(f"v_and_b32 v{V_S+1}, 7, v{V_LANE}")
        for i in range(8):
            a(f"s_waitcnt lgkmcnt({7-i})")
            o = own + 4 * i
            for j in range(4):
                a(f"v_mul_f32 v{o+j}, v{o+j}, v{A0}")
                a(f"v_fma_f32 v{o+j}, v{V_KF+4*i+j}, v{A1}, v{o+j}")
            a(f"v_cvt_pk_bf16_f32 v{V_VF+2*i}, v{o}, v{o+1}")
            a(f"v_cvt_pk_bf16_f32 v{V_VF+2*i+1}, v{o+2}, v{o+3}")
            a(f"v_xor_b32 v{V_S+2}, {i}, v{V_S+1}")
            a(f"v_lshl_add_u32 v{V_S+2}, v{V_S+2}, 4, v{V_S}")
            a(f"ds_write_b64 v{V_S+2}, v[{V_VF+2*i}:{V_VF+2*i+1}]")
        a("s_waitcnt lgkmcnt(0)")
        a(f"v_lshrrev_b32 v{V_S+3}, 3, v{V_LANE}")
        a(f"v_xor_b32 v{V_S+7}, v{V_S+3}, v{V_LANE}")
        a(f"v_and_b32 v{V_S+7}, 7, v{V_S+7}")
        a(f"v_lshlrev_b32 v{V_S+7}, 4, v{V_S+7}")
        a(f"v_lshl_add_u32 v{V_S+7}, v{V_S+3}, 7, v{V_S+7}")
        a(f"v_add_u32 v{V_S+7}, s{S_T0}, v{V_S+7}")
        for it in range(4):
            a(f"ds_read_b128 v[{V_KF+4*it}:{V_KF+4*it+3}], v{V_S+7} offset:{1024*it}")
        a(f"s_lshr_b32 s{S_T1}, s2, 5")
        a(f"s_lshl_b32 s{S_T1}, s{S_T1}, 7")
        a(f"s_lshl_b32 s{S_T2}, s{S_QB}, 5")
        a(f"s_add_u32 s{S_T1}, s{S_T1}, s{S_T2}")
        a(f"s_mul_i32 s{S_T1}, s{S_T1}, {OLD}")
        a(f"s_and_b32 s{S_T2}, s2, 31")
        a(f"s_lshl_b32 s{S_T2}, s{S_T2}, 8")
        a(f"s_add_u32 s{S_OOFF}, s{S_T1}, s{S_T2}")
        a(f"s_add_u32 s{S_OOFF}, s{S_OOFF}, {128*g}")
        a(f"v_mul_u32_u24 v{V_S+5}, {OLD}, v{V_S+3}")
        a(f"v_and_b32 v{V_S+4}, 7, v{V_LANE}")
        a(f"v_lshl_add_u32 v{V_S+5}, v{V_S+4}, 4, v{V_S+5}")
        for it in range(4):
            a(f"s_waitcnt lgkmcnt({3-it})")
            a(f"s_add_u32 s{S_T1}, s{S_OOFF}, {8*it*OLD}")
            a(f"buffer_store_dwordx4 v[{V_KF+4*it}:{V_KF+4*it+3}], v{V_S+5}, s[{SRD_O}:{SRD_O+3}], s{S_T1} offen")
    epi(1)
    a(f"s_branch {name}_fin")
    a.label(f"{name}_g0")
    epi(0)
    a.label(f"{name}_fin")
    if TS:
        stamp(3)
        a("s_waitcnt vmcnt(0)")
        stamp(4)
        a(f"s_and_b32 s62, s2, 31")
        a(f"s_cmp_lg_u32 s62, {int(TS)}")
        a(f"s_cbranch_scc1 {name}_done")
        a(f"s_load_dwordx2 s[60:61], s[0:1], {KA_DBG}")
        a(f"s_lshr_b32 s62, s2, 5")
        a(f"s_lshl_b32 s62, s62, 5")
        a("s_waitcnt lgkmcnt(0)")
        for i in range(5):
            a(f"v_mov_b32 v0, s{40+2*i}")
            a(f"v_mov_b32 v1, s62")
            a(f"global_store_dword v1, v0, s[60:61] offset:{4*i}")
    a.label(f"{name}_done")
    a("s_endpgm")
    return a.text(), V_END + 8, 163840, 256, None
```

```python
from gen_common import *

SCALE_LOG2E = (128 ** -0.5) * 1.4426950408889634

def f32hex(x):
    import struct
    return "0x%08x" % struct.unpack("<I", struct.pack("<f", x))[0]

OLD = 8192 + 128
def gen_attn(name, nocompute=False, nodma=False, nt=False, rot=False):
    NS, DIST = 4, 3
    SLOT = 32768
    NQ, NKV = 9, 16
    NSEQ = NQ + NKV
    QX = 65536
    a = Asm()
    SRD_K, SRD_V, SRD_X, SRD_W, SRD_O = 4, 8, 12, 16, 36
    S_WAVE, S_QB, S_G = 21, 22, 23
    S_KVOFF = 24
    S_T0, S_T1, S_T2 = 25, 26, 27
    S_C = 28
    S_LDSW = 30
    S_OOFF = 31
    S_THR = 32
    S_XOFF, S_WOFF = 33, 34
    V_LANE = 1
    V_KOFF0, V_KOFF1, V_VOFF = 2, 3, 4
    V_KAD = 5
    V_VAD = 13
    V_KC = 17
    V_VC = 25
    V_M, V_L, V_ALPHA = 29, 30, 31
    V_T = 32
    V_P = 40
    V_Q = 48
    V_S = 80
    V_KF = 96
    V_VF = 128
    V_O = 160
    V_XOFF0, V_XOFF1, V_WOFF = 224, 225, 226
    V_XAD = 227
    V_KE = 232
    V_VE = 240
    V_END = 244

    a(f"s_cmp_ge_u32 s2, 256")
    a(f"s_cbranch_scc1 {name}_done")
    import os
    TS = os.environ.get("TS")
    def stamp(i):
        if TS:
            a(f"s_memtime s[{40+2*i}:{41+2*i}]")
            a("s_waitcnt lgkmcnt(0)")
    stamp(0)
    a(f"s_load_dwordx2 s[{SRD_K}:{SRD_K+1}], s[0:1], {KA_K}")
    a(f"s_load_dwordx2 s[{SRD_V}:{SRD_V+1}], s[0:1], {KA_V}")
    a(f"s_load_dwordx2 s[{SRD_X}:{SRD_X+1}], s[0:1], {KA_X}")
    a(f"s_load_dwordx2 s[{SRD_W}:{SRD_W+1}], s[0:1], {KA_WQ}")
    a(f"s_load_dwordx2 s[{SRD_O}:{SRD_O+1}], s[0:1], {KA_WS}")
    a(f"v_lshrrev_b32 v{V_T}, 6, v0")
    a(f"v_and_b32 v{V_LANE}, 63, v0")
    a("s_nop 0")
    a(f"v_readfirstlane_b32 s{S_WAVE}, v{V_T}")
    a("s_waitcnt lgkmcnt(0)")
    for sd, nbytes, add in ((SRD_K, 8*32*1024*128*2, 0), (SRD_V, 8*32*1024*128*2, 0), (SRD_X, 1024*576*2, 0),
                            (SRD_W, 576*4096*2, 0), (SRD_O, 1024*OLD, 8*1024*1024)):
        if add:
            a(f"s_add_u32 s{sd}, s{sd}, {add}")
            a(f"s_addc_u32 s{sd+1}, s{sd+1}, 0")
        a(f"s_and_b32 s{sd+1}, s{sd+1}, 0xffff")
        a(f"s_mov_b32 s{sd+2}, {nbytes}")
        a(f"s_mov_b32 s{sd+3}, 0x00020000")
    a(f"s_and_b32 s{S_QB}, s{S_WAVE}, 3")
    a(f"s_lshr_b32 s{S_G}, s{S_WAVE}, 2")
    a(f"s_mov_b32 s{S_C}, {f32hex(SCALE_LOG2E)}")
    a(f"s_mov_b32 s{S_THR}, 0x41000000")
    a(f"s_lshl_b32 s{S_LDSW}, s{S_WAVE}, 11")
    a(f"s_lshl_b32 s{S_KVOFF}, s2, 18")
    a(f"s_add_u32 s{S_KVOFF}, s{S_KVOFF}, s{S_LDSW}")
    a(f"s_lshr_b32 s{S_T0}, s2, 5")
    a(f"s_lshl_b32 s{S_T0}, s{S_T0}, 7")
    a(f"s_lshl_b32 s{S_T1}, s{S_WAVE}, 4")
    a(f"s_add_u32 s{S_T0}, s{S_T0}, s{S_T1}")
    a(f"s_mul_i32 s{S_XOFF}, s{S_T0}, 1152")
    a(f"s_lshl_b32 s{S_WOFF}, s{S_WAVE}, 16")
    a(f"s_and_b32 s{S_T1}, s2, 31")
    a(f"s_lshl_b32 s{S_T1}, s{S_T1}, 8")
    a(f"s_add_u32 s{S_WOFF}, s{S_WOFF}, s{S_T1}")
    a(f"v_lshrrev_b32 v{V_T}, 4, v{V_LANE}")
    a(f"v_and_b32 v{V_T+1}, 15, v{V_LANE}")
    a(f"s_and_b32 s{S_T0}, s{S_WAVE}, 1")
    a(f"s_lshl_b32 s{S_T0}, s{S_T0}, 3")
    a(f"v_add_u32 v{V_T+2}, s{S_T0}, v{V_T}")
    a(f"v_xor_b32 v{V_T+3}, v{V_T+1}, v{V_T+2}")
    a(f"v_lshlrev_b32 v{V_T+3}, 4, v{V_T+3}")
    a(f"v_lshl_add_u32 v{V_KOFF0}, v{V_T}, 8, v{V_T+3}")
    a(f"v_add_u32 v{V_T+2}, 4, v{V_T+2}")
    a(f"v_xor_b32 v{V_T+3}, v{V_T+1}, v{V_T+2}")
    a(f"v_lshlrev_b32 v{V_T+3}, 4, v{V_T+3}")
    a(f"v_lshl_add_u32 v{V_KOFF1}, v{V_T}, 8, v{V_T+3}")
    a(f"v_lshlrev_b32 v{V_T+2}, 2, v{V_T}")
    a(f"v_xor_b32 v{V_T+3}, v{V_T+1}, v{V_T+2}")
    a(f"v_lshlrev_b32 v{V_T+3}, 4, v{V_T+3}")
    a(f"v_lshl_add_u32 v{V_VOFF}, v{V_T}, 8, v{V_T+3}")
    a(f"v_lshl_add_u32 v{V_WOFF}, v{V_T}, 13, v{V_T+3}")
    a(f"v_lshrrev_b32 v{V_T}, 3, v{V_LANE}")
    a(f"v_mul_u32_u24 v{V_T}, 1152, v{V_T}")
    a(f"v_and_b32 v{V_T+1}, 7, v{V_LANE}")
    a(f"v_lshrrev_b32 v{V_T+2}, 4, v{V_LANE}")
    a(f"v_xor_b32 v{V_T+1}, v{V_T+1}, v{V_T+2}")
    a(f"v_lshl_add_u32 v{V_XOFF0}, v{V_T+1}, 4, v{V_T}")
    a(f"v_xor_b32 v{V_T+1}, 4, v{V_T+1}")
    a(f"v_lshl_add_u32 v{V_XOFF1}, v{V_T+1}, 4, v{V_T}")

    def slot_of(seq):
        return seq % 3 if seq < NQ else (seq - NQ + 3) % 5
    def issue(seq):
        if nodma: return
        base = slot_of(seq) * SLOT
        if seq < NQ:
            parts = ((0, SRD_X, S_XOFF, (V_XOFF0, V_XOFF1), 8 * 1152), (16384, SRD_W, S_WOFF, (V_WOFF, V_WOFF), 4 * 8192))
        else:
            parts = ((0, SRD_K, S_KVOFF, (V_KOFF0, V_KOFF1), 1024), (16384, SRD_V, S_KVOFF, (V_VOFF, V_VOFF), 1024))
        for part, srd, soff, voffs, jstride in parts:
            for j in range(2):
                a(f"s_add_u32 s{S_T0}, s{S_LDSW}, {base + part + j*1024}")
                a(f"s_mov_b32 m0, s{S_T0}")
                a(f"s_add_u32 s{S_T1}, s{soff}, {j*jstride}")
                a(f"buffer_load_dwordx4 v{voffs[j]}, s[{srd}:{srd+3}], s{S_T1} offen" + (" nt" if (nt and seq >= NQ) else "") + " lds")
        if seq < NQ:
            a(f"s_add_u32 s{S_XOFF}, s{S_XOFF}, 128")
            a(f"s_add_u32 s{S_WOFF}, s{S_WOFF}, {64*8192}")
        else:
            a(f"s_add_u32 s{S_KVOFF}, s{S_KVOFF}, {64*256}")

    for s_ in (0, 1, NQ, NQ + 1):
        issue(s_)
    PF = 0
    if PF and not nodma:
        a(f"s_lshr_b32 s{S_T0}, s{S_WAVE}, 1")
        a(f"s_and_b32 s{S_T0}, s{S_T0}, 1")
        a(f"s_cmp_eq_u32 s{S_T0}, 0")
        for i in range(4):
            a(f"s_cselect_b32 s{44+i}, s{SRD_K+i}, s{SRD_V+i}")
        a(f"s_lshl_b32 s{S_T1}, s2, 18")
        a(f"s_lshl_b32 s{S_T2}, s{S_G}, 14")
        a(f"s_add_u32 s{S_T1}, s{S_T1}, s{S_T2}")
        a(f"s_and_b32 s{S_T2}, s{S_WAVE}, 1")
        a(f"s_lshl_b32 s{S_T2}, s{S_T2}, 13")
        a(f"s_add_u32 s{S_T1}, s{S_T1}, s{S_T2}")
        a(f"v_lshlrev_b32 v{V_T}, 7, v{V_LANE}")
        for r in range(PF):
            a(f"buffer_load_dword v{V_END+r}, v{V_T}, s[44:47], s{S_T1} offen offset:0")
            a(f"s_add_u32 s{S_T1}, s{S_T1}, 32768")

    a(f"s_lshl_b32 s{S_T0}, s{S_G}, 5")
    a(f"v_and_b32 v{V_T}, 31, v{V_LANE}")
    a(f"v_add_u32 v{V_T}, s{S_T0}, v{V_T}")
    a(f"v_lshlrev_b32 v{V_T}, 8, v{V_T}")
    a(f"v_lshrrev_b32 v{V_T+1}, 5, v{V_LANE}")
    a(f"v_and_b32 v{V_T+2}, 15, v{V_LANE}")
    a(f"v_xor_b32 v{V_T+1}, v{V_T+1}, v{V_T+2}")
    for ks in range(8):
        a(f"v_xor_b32 v{V_T+2}, {2*ks}, v{V_T+1}")
        a(f"v_lshl_add_u32 v{V_KAD+ks}, v{V_T+2}, 4, v{V_T}")
    a(f"v_lshrrev_b32 v{V_T+4}, 5, v{V_LANE}")
    a(f"v_lshrrev_b32 v{V_T+1}, 2, v{V_LANE}")
    a(f"v_and_b32 v{V_T+1}, 3, v{V_T+1}")
    a(f"v_lshlrev_b32 v{V_T}, 2, v{V_T+4}")
    a(f"v_add_u32 v{V_T}, v{V_T}, v{V_T+1}")
    a(f"v_add_u32 v{V_T}, s{S_T0}, v{V_T}")
    a(f"v_lshlrev_b32 v{V_T}, 8, v{V_T}")
    a(f"v_add_u32 v{V_T}, 16384, v{V_T}")
    a(f"v_and_b32 v{V_T+2}, 1, v{V_LANE}")
    a(f"v_lshl_add_u32 v{V_T}, v{V_T+2}, 3, v{V_T}")
    a(f"v_lshlrev_b32 v{V_T+5}, 3, v{V_T+4}")
    a(f"v_add_u32 v{V_T+5}, v{V_T+5}, v{V_T+1}")
    a(f"v_lshlrev_b32 v{V_T+5}, 8, v{V_T+5}")
    a(f"v_add_u32 v{V_T+5}, 16384, v{V_T+5}")
    a(f"v_lshl_add_u32 v{V_T+5}, v{V_T+2}, 3, v{V_T+5}")
    a(f"v_lshlrev_b32 v{V_T+1}, 2, v{V_T+1}")
    a(f"v_lshrrev_b32 v{V_T+2}, 4, v{V_LANE}")
    a(f"v_and_b32 v{V_T+2}, 1, v{V_T+2}")
    a(f"v_lshlrev_b32 v{V_T+2}, 1, v{V_T+2}")
    a(f"v_lshrrev_b32 v{V_T+3}, 1, v{V_LANE}")
    a(f"v_and_b32 v{V_T+3}, 1, v{V_T+3}")
    a(f"v_add_u32 v{V_T+2}, v{V_T+2}, v{V_T+3}")
    for db in range(4):
        a(f"v_add_u32 v{V_T+3}, {4*db}, v{V_T+2}")
        a(f"v_xor_b32 v{V_T+3}, v{V_T+3}, v{V_T+1}")
        a(f"v_lshl_add_u32 v{V_VAD+db}, v{V_T+3}, 4, v{V_T}")
    a(f"s_lshl_b32 s{S_T1}, s{S_G}, 3")
    for i in range(2):
        a(f"v_add_u32 v{V_T+3}, s{S_T1}, v{V_T+2}")
        if i: a(f"v_add_u32 v{V_T+3}, 4, v{V_T+3}")
        a(f"v_xor_b32 v{V_T+3}, v{V_T+3}, v{V_T+1}")
        a(f"v_lshl_add_u32 v{V_P+i}, v{V_T+3}, 4, v{V_T+5}")
        a(f"v_add_u32 v{V_P+2+i}, 65536, v{V_P+i}")
    a(f"s_lshl_b32 s{S_T1}, s{S_QB}, 5")
    a(f"v_and_b32 v{V_T}, 31, v{V_LANE}")
    a(f"v_add_u32 v{V_T}, s{S_T1}, v{V_T}")
    a(f"v_lshlrev_b32 v{V_T}, 7, v{V_T}")
    a(f"v_lshrrev_b32 v{V_T+1}, 1, v{V_LANE}")
    a(f"v_and_b32 v{V_T+1}, 7, v{V_T+1}")
    a(f"v_xor_b32 v{V_T+1}, v{V_T+1}, v{V_T+4}")
    for ks in range(4):
        a(f"v_xor_b32 v{V_T+2}, {2*ks}, v{V_T+1}")
        a(f"v_lshl_add_u32 v{V_XAD+ks}, v{V_T+2}, 4, v{V_T}")
        a(f"v_add_u32 v{V_P+4+ks}, 65536, v{V_XAD+ks}")
    for ks in range(8):
        a(f"v_add_u32 v{V_KC+ks}, 65536, v{V_KAD+ks}")
    for db in range(4):
        a(f"v_add_u32 v{V_VC+db}, 65536, v{V_VAD+db}")
    for ks in range(8):
        a(f"v_add_u32 v{V_KE+ks}, 131072, v{V_KAD+ks}")
    for db in range(4):
        a(f"v_add_u32 v{V_VE+db}, 131072, v{V_VAD+db}")
    a(f"v_mov_b32 v{V_M}, 0xff800000")
    a(f"v_mov_b32 v{V_L}, 0")
    for r in range(32):
        a(f"v_mov_b32 v{V_O+r}, 0")

    NDMA = 4
    def head(seq):
        if seq < 2: w = 3
        elif seq < NQ: w = 1
        else: w = min(3, NSEQ - 1 - seq)
        a(f"s_waitcnt vmcnt({NDMA*w})")
        a("s_barrier")
        if seq < NQ:
            nxt = seq + 2 if seq + 2 < NQ else seq + 4
        else:
            nxt = seq + 4
        if nxt < NSEQ:
            issue(nxt)

    def qstep(seq):
        head(seq)
        if nocompute: return
        slot = slot_of(seq)
        hi = slot >= 2
        so = (slot % 2) * SLOT
        def qreads(ks):
            xa = (V_P + 4 + ks) if hi else (V_XAD + ks)
            a(f"ds_read_b128 v[{V_KF+4*ks}:{V_KF+4*ks+3}], v{xa} offset:{so}")
            for i in range(2):
                wa = (V_P + 2 + i) if hi else (V_P + i)
                r = V_VF + (ks * 2 + i) * 4
                for u in range(2):
                    a(f"ds_read_b64_tr_b16 v[{r+2*u}:{r+2*u+1}], v{wa} offset:{so+(16*ks+4*u)*256}")
        qreads(0); qreads(1)
        for ks in range(4):
            if ks + 2 < 4:
                qreads(ks + 2)
            a(f"s_waitcnt lgkmcnt({5*min(2, 3-ks)})")
            for i in range(2):
                r = V_VF + (ks * 2 + i) * 4
                o = V_O + 16 * i
                a(f"v_mfma_f32_32x32x16_bf16 v[{o}:{o+15}], v[{r}:{r+3}], v[{V_KF+4*ks}:{V_KF+4*ks+3}], v[{o}:{o+15}]")

    uidc = [0]
    def kvstep(seq):
        uid = uidc[0]; uidc[0] += 1
        head(seq)
        if nocompute: return
        slot = slot_of(seq)
        KA = (V_KAD, V_KC, V_KE)[slot // 2]
        VA = (V_VAD, V_VC, V_VE)[slot // 2]
        so = (slot % 2) * SLOT
        for ks in range(8):
            a(f"ds_read_b128 v[{V_KF+4*ks}:{V_KF+4*ks+3}], v{KA+ks} offset:{so}")
        for ks in range(8):
            a(f"s_waitcnt lgkmcnt({7-ks})")
            c = "0" if ks == 0 else f"v[{V_S}:{V_S+15}]"
            a(f"v_mfma_f32_32x32x16_bf16 v[{V_S}:{V_S+15}], v[{V_KF+4*ks}:{V_KF+4*ks+3}], v[{V_Q+4*ks}:{V_Q+4*ks+3}], {c}")
        for t in range(2):
            for db in range(4):
                r = V_VF + (t * 4 + db) * 4
                for u in range(2):
                    a(f"ds_read_b64_tr_b16 v[{r+2*u}:{r+2*u+1}], v{VA+db} offset:{so+(16*t+8*u)*256}")
        a("s_nop 7"); a("s_nop 3")
        S = V_S; T = V_T
        a(f"v_max3_f32 v{T}, v{S}, v{S+1}, v{S+2}")
        a(f"v_max3_f32 v{T+1}, v{S+3}, v{S+4}, v{S+5}")
        a(f"v_max3_f32 v{T+2}, v{S+6}, v{S+7}, v{S+8}")
        a(f"v_max3_f32 v{T+3}, v{S+9}, v{S+10}, v{S+11}")
        a(f"v_max3_f32 v{T+4}, v{S+12}, v{S+13}, v{S+14}")
        a(f"v_max3_f32 v{T}, v{T}, v{T+1}, v{T+2}")
        a(f"v_max3_f32 v{T+3}, v{T+3}, v{T+4}, v{S+15}")
        a(f"v_max_f32 v{T}, v{T}, v{T+3}")
        a(f"v_mov_b32 v{T+1}, v{T}")
        a("s_nop 1")
        a(f"v_permlane32_swap_b32 v{T}, v{T+1}")
        a(f"v_max_f32 v{T}, v{T}, v{T+1}")
        a(f"v_mul_f32 v{T}, s{S_C}, v{T}")
        a(f"v_max_f32 v{T+1}, v{V_M}, v{T}")
        a(f"v_sub_f32 v{T+2}, v{T+1}, v{V_M}")
        a(f"v_cmp_gt_f32 vcc, v{T+2}, s{S_THR}")
        a("s_cmp_lg_u64 vcc, 0")
        a(f"s_cbranch_scc0 {name}_skip{uid}")
        a(f"v_sub_f32 v{T+2}, v{V_M}, v{T+1}")
        a(f"v_exp_f32 v{V_ALPHA}, v{T+2}")
        a(f"v_mov_b32 v{V_M}, v{T+1}")
        a(f"v_mul_f32 v{V_L}, v{V_L}, v{V_ALPHA}")
        for r in range(64):
            a(f"v_mul_f32 v{V_O+r}, v{V_O+r}, v{V_ALPHA}")
        a.label(f"{name}_skip{uid}")
        for i in range(16):
            a(f"v_fma_f32 v{S+i}, v{S+i}, s{S_C}, -v{V_M}")
        for i in range(16):
            a(f"v_exp_f32 v{S+i}, v{S+i}")
        for i in range(0, 16, 2):
            a(f"v_add_f32 v{T+2}, v{S+i}, v{S+i+1}")
            a(f"v_add_f32 v{V_L}, v{V_L}, v{T+2}")
        for i in range(8):
            a(f"v_cvt_pk_bf16_f32 v{V_P+i}, v{S+2*i}, v{S+2*i+1}")
        a("s_nop 1")
        n = 0
        for t in range(2):
            for db in range(4):
                r = V_VF + (t * 4 + db) * 4
                a(f"s_waitcnt lgkmcnt({14 - 2*n})"); n += 1
                o = V_O + 16 * db
                a(f"v_mfma_f32_32x32x16_bf16 v[{o}:{o+15}], v[{r}:{r+3}], v[{V_P+4*t}:{V_P+4*t+3}], v[{o}:{o+15}]")

    for seq in range(NQ):
        qstep(seq)
    a("s_nop 7"); a("s_nop 7")
    a("s_barrier")
    a(f"s_lshl_b32 s{S_T1}, s{S_QB}, 5")
    a(f"v_and_b32 v{V_T}, 31, v{V_LANE}")
    a(f"v_add_u32 v{V_T}, s{S_T1}, v{V_T}")
    a(f"v_lshlrev_b32 v{V_T}, 8, v{V_T}")
    a(f"v_add_u32 v{V_T}, {QX}, v{V_T}")
    a(f"v_lshrrev_b32 v{V_T+1}, 5, v{V_LANE}")
    a(f"v_lshl_add_u32 v{V_T}, v{V_T+1}, 3, v{V_T}")
    a(f"v_and_b32 v{V_T+1}, 15, v{V_LANE}")
    a(f"s_lshl_b32 s{S_T1}, s{S_G}, 3")
    for i in range(2):
        for gg in range(4):
            o = V_O + 16 * i + 4 * gg
            a(f"v_cvt_pk_bf16_f32 v{V_KF}, v{o}, v{o+1}")
            a(f"v_cvt_pk_bf16_f32 v{V_KF+1}, v{o+2}, v{o+3}")
            a(f"v_add_u32 v{V_T+2}, {4*i+gg}, s{S_T1}") if False else None
            a(f"s_add_u32 s{S_T2}, s{S_T1}, {4*i+gg}")
            a(f"v_xor_b32 v{V_T+2}, s{S_T2}, v{V_T+1}")
            a(f"v_lshl_add_u32 v{V_T+2}, v{V_T+2}, 4, v{V_T}")
            a(f"ds_write_b64 v{V_T+2}, v[{V_KF}:{V_KF+1}]")
    a("s_waitcnt lgkmcnt(0)")
    a("s_barrier")
    a(f"v_lshrrev_b32 v{V_T+2}, 5, v{V_LANE}")
    a(f"v_xor_b32 v{V_T+2}, v{V_T+2}, v{V_T+1}")
    a(f"v_lshrrev_b32 v{V_T+3}, 5, v{V_LANE}")
    a(f"v_lshlrev_b32 v{V_T+3}, 3, v{V_T+3}")
    a(f"v_sub_u32 v{V_T+3}, v{V_T}, v{V_T+3}")
    for ks in range(8):
        a(f"v_xor_b32 v{V_T+4}, {2*ks}, v{V_T+2}")
        a(f"v_lshl_add_u32 v{V_T+4}, v{V_T+4}, 4, v{V_T+3}")
        a(f"ds_read_b128 v[{V_Q+4*ks}:{V_Q+4*ks+3}], v{V_T+4}")
    for r in range(64):
        a(f"v_mov_b32 v{V_O+r}, 0")
    a("s_waitcnt lgkmcnt(0)")

    stamp(1)
    for seq in range(NQ, NSEQ):
        kvstep(seq)
    stamp(2)

    a("s_nop 7"); a("s_nop 7")
    a(f"v_mov_b32 v{V_T}, v{V_L}")
    a("s_nop 1")
    a(f"v_permlane32_swap_b32 v{V_L}, v{V_T}")
    a(f"v_add_f32 v{V_L}, v{V_L}, v{V_T}")
    a("s_barrier")
    a(f"v_lshlrev_b32 v{V_T}, 2, v{V_LANE}")
    a(f"s_mul_i32 s{S_T0}, s{S_QB}, {66*256}")
    a(f"v_add_u32 v{V_T}, s{S_T0}, v{V_T}")
    a(f"s_cmp_eq_u32 s{S_G}, 0")
    a(f"s_cbranch_scc1 {name}_g0")
    for r in range(64):
        a(f"ds_write_b32 v{V_T}, v{V_O+r} offset:{256*r}")
    a(f"ds_write_b32 v{V_T}, v{V_M} offset:{256*64}")
    a(f"ds_write_b32 v{V_T}, v{V_L} offset:{256*65}")
    a("s_waitcnt lgkmcnt(0)")
    a("s_barrier")
    a(f"s_branch {name}_done")
    a.label(f"{name}_g0")
    a("s_barrier")
    M1, L1 = V_T + 1, V_T + 2
    a(f"ds_read_b32 v{M1}, v{V_T} offset:{256*64}")
    a(f"ds_read_b32 v{L1}, v{V_T} offset:{256*65}")
    a("s_waitcnt lgkmcnt(0)")
    MN, A0, A1 = V_T + 3, V_T + 4, V_T + 5
    a(f"v_max_f32 v{MN}, v{V_M}, v{M1}")
    a(f"v_sub_f32 v{A0}, v{V_M}, v{MN}")
    a(f"v_sub_f32 v{A1}, v{M1}, v{MN}")
    a(f"v_exp_f32 v{A0}, v{A0}")
    a(f"v_exp_f32 v{A1}, v{A1}")
    a("s_nop 0")
    a(f"v_mul_f32 v{V_L}, v{V_L}, v{A0}")
    a(f"v_fma_f32 v{V_L}, v{L1}, v{A1}, v{V_L}")
    a(f"v_rcp_f32 v{V_L}, v{V_L}")
    a("s_nop 0")
    a(f"v_mul_f32 v{A0}, v{A0}, v{V_L}")
    a(f"v_mul_f32 v{A1}, v{A1}, v{V_L}")
    for blk in range(4):
        for r in range(16):
            a(f"ds_read_b32 v{V_KF+r}, v{V_T} offset:{256*(16*blk+r)}")
        a("s_waitcnt lgkmcnt(0)")
        for r in range(16):
            o = V_O + 16 * blk + r
            a(f"v_mul_f32 v{o}, v{o}, v{A0}")
            a(f"v_fma_f32 v{o}, v{V_KF+r}, v{A1}, v{o}")
    OX = 98304
    a(f"s_lshl_b32 s{S_T0}, s{S_QB}, 13")
    a(f"s_add_u32 s{S_T0}, s{S_T0}, {OX}")
    a(f"v_and_b32 v{V_T+6}, 31, v{V_LANE}")
    a(f"v_lshlrev_b32 v{V_T+6}, 8, v{V_T+6}")
    a(f"v_add_u32 v{V_T+6}, s{S_T0}, v{V_T+6}")
    a(f"v_lshrrev_b32 v{V_T+7}, 5, v{V_LANE}")
    a(f"v_lshl_add_u32 v{V_S}, v{V_T+7}, 3, v{V_T+6}")
    a(f"v_and_b32 v{V_S+1}, 15, v{V_LANE}")
    for db in range(4):
        for gg in range(4):
            o = V_O + 16 * db + 4 * gg
            a(f"v_cvt_pk_bf16_f32 v{V_VF}, v{o}, v{o+1}")
            a(f"v_cvt_pk_bf16_f32 v{V_VF+1}, v{o+2}, v{o+3}")
            a(f"v_xor_b32 v{V_S+2}, {4*db+gg}, v{V_S+1}")
            a(f"v_lshl_add_u32 v{V_S+2}, v{V_S+2}, 4, v{V_S}")
            a(f"ds_write_b64 v{V_S+2}, v[{V_VF}:{V_VF+1}]")
    a("s_waitcnt lgkmcnt(0)")
    a(f"v_lshrrev_b32 v{V_S+3}, 4, v{V_LANE}")
    a(f"v_and_b32 v{V_S+4}, 15, v{V_LANE}")
    a(f"s_lshr_b32 s{S_T1}, s2, 5")
    a(f"s_lshl_b32 s{S_T1}, s{S_T1}, 7")
    a(f"s_lshl_b32 s{S_T2}, s{S_QB}, 5")
    a(f"s_add_u32 s{S_T1}, s{S_T1}, s{S_T2}")
    a(f"s_mul_i32 s{S_T1}, s{S_T1}, {OLD}")
    a(f"s_and_b32 s{S_T2}, s2, 31")
    a(f"s_lshl_b32 s{S_T2}, s{S_T2}, 8")
    a(f"s_add_u32 s{S_OOFF}, s{S_T1}, s{S_T2}")
    a(f"v_mul_u32_u24 v{V_S+5}, {OLD}, v{V_S+3}")
    a(f"v_lshl_add_u32 v{V_S+5}, v{V_S+4}, 4, v{V_S+5}")
    for it in range(8):
        a(f"v_add_u32 v{V_S+6}, {4*it}, v{V_S+3}")
        a(f"v_and_b32 v{V_S+7}, 15, v{V_S+6}")
        a(f"v_xor_b32 v{V_S+7}, v{V_S+7}, v{V_S+4}")
        a(f"v_lshlrev_b32 v{V_S+7}, 4, v{V_S+7}")
        a(f"v_lshl_add_u32 v{V_S+7}, v{V_S+6}, 8, v{V_S+7}")
        a(f"v_add_u32 v{V_S+7}, s{S_T0}, v{V_S+7}")
        a(f"ds_read_b128 v[{V_KF+4*it}:{V_KF+4*it+3}], v{V_S+7}")
    for it in range(8):
        a(f"s_waitcnt lgkmcnt({7-it})")
        a(f"s_add_u32 s{S_T1}, s{S_OOFF}, {4*it*OLD}")
        a(f"buffer_store_dwordx4 v[{V_KF+4*it}:{V_KF+4*it+3}], v{V_S+5}, s[{SRD_O}:{SRD_O+3}], s{S_T1} offen")
    if TS:
        stamp(3)
        a("s_waitcnt vmcnt(0)")
        stamp(4)
        a(f"s_cmp_lg_u32 s2, {int(TS)}")
        a(f"s_cbranch_scc1 {name}_done")
        a(f"s_load_dwordx2 s[60:61], s[0:1], {KA_DBG}")
        a("s_waitcnt lgkmcnt(0)")
        for i in range(5):
            a(f"v_mov_b32 v0, s{40+2*i}")
            a(f"v_mov_b32 v1, 0")
            a(f"global_store_dword v1, v0, s[60:61] offset:{4*i}")
    a.label(f"{name}_done")
    a("s_endpgm")
    return a.text(), V_END + 8, 163840, 256, None
```

```python
from gen_common import *

def gen_gemm(name, M, N, K, TM, TN, WNn, a_src, b_src, c_dst, lda, ldb, ldc, stages, KC=64):
    NKS = KC // 16
    dist = stages - 1
    NC = K // KC
    assert K % KC == 0
    WMn = 4 // WNn
    WM, WN = TM // WMn, TN // WNn
    MB, NB = WM // 32, WN // 32
    AROW = KC * 2
    ACPR = AROW // 16
    assert ACPR in (8, 16)
    A_BYTES = TM * AROW
    B_BYTES = KC * TN * 2
    ST_BYTES = A_BYTES + B_BYTES
    ROWB = TN * 2
    CPR = ROWB // 16
    assert CPR in (8, 16)
    nA = A_BYTES // 1024
    nB = B_BYTES // 1024
    rowsA = 1024 // AROW
    rowsB = 1024 // ROWB
    assert nA % 4 == 0 and nB % 4 == 0
    nAw, nBw = nA // 4, nB // 4
    NDMA = nAw + nBw
    NTM, NTN = M // TM, N // TN
    ntiles = NTM * NTN
    lds_total = stages * ST_BYTES

    a = Asm()
    SRD_A, SRD_B, SRD_C = 4, 8, 12
    S_M0T, S_N0T, S_WAVE = 16, 17, 18
    S_OFFA, S_OFFB = 20, 21
    S_T0, S_T1, S_T2 = 22, 23, 24
    S_CNT = 25
    S_LDSA, S_LDSB = 26, 27
    S_COFF = 28
    V_LANE = 1
    V_OFFA0, V_OFFA1, V_OFFB = 2, 3, 4
    V_OFFC = 5
    V_T = 6
    V_AADDR = 10
    V_BADDR = V_AADDR + NKS
    V_ACUR = V_BADDR + NB
    V_BCUR = V_ACUR + NKS
    V_AF = ((V_BCUR + NB + 3) // 4) * 4
    V_BF = V_AF + 2 * MB * 4
    V_ACC = V_BF + 2 * NB * 4
    nacc = MB * NB * 16
    V_END = V_ACC + nacc

    a(f"s_cmp_ge_u32 s2, {ntiles}")
    a(f"s_cbranch_scc1 {name}_done")
    a(f"s_load_dwordx2 s[{SRD_A}:{SRD_A+1}], s[0:1], {a_src[0]}")
    a(f"s_load_dwordx2 s[{SRD_B}:{SRD_B+1}], s[0:1], {b_src[0]}")
    a(f"s_load_dwordx2 s[{SRD_C}:{SRD_C+1}], s[0:1], {c_dst[0]}")
    assert NTM & (NTM - 1) == 0
    a(f"s_and_b32 s{S_M0T}, s2, {NTM-1}")
    a(f"s_lshr_b32 s{S_N0T}, s2, {NTM.bit_length()-1}")
    a(f"s_mul_i32 s{S_M0T}, s{S_M0T}, {TM}")
    a(f"s_mul_i32 s{S_N0T}, s{S_N0T}, {TN}")
    import os
    if os.environ.get("SAMET"):
        a(f"s_mov_b32 s{S_M0T}, 0"); a(f"s_mov_b32 s{S_N0T}, 0")
    a(f"v_lshrrev_b32 v{V_T}, 6, v0")
    a(f"v_and_b32 v{V_LANE}, 63, v0")
    a("s_nop 0")
    a(f"v_readfirstlane_b32 s{S_WAVE}, v{V_T}")
    a("s_waitcnt lgkmcnt(0)")
    for sd, src in ((SRD_A, a_src), (SRD_B, b_src), (SRD_C, c_dst)):
        if src[1]:
            a(f"s_add_u32 s{sd}, s{sd}, {src[1]}")
            a(f"s_addc_u32 s{sd+1}, s{sd+1}, 0")
        a(f"s_and_b32 s{sd+1}, s{sd+1}, 0xffff")
        a(f"s_mov_b32 s{sd+2}, {src[2]}")
        a(f"s_mov_b32 s{sd+3}, 0x00020000")
    if ACPR == 8:
        a(f"v_lshrrev_b32 v{V_T}, 3, v{V_LANE}")
        a(f"s_mov_b32 s{S_T0}, {lda}")
        a(f"v_mul_lo_u32 v{V_OFFA0}, v{V_T}, s{S_T0}")
        a(f"v_and_b32 v{V_T}, 7, v{V_LANE}")
        a(f"v_lshrrev_b32 v{V_T+1}, 4, v{V_LANE}")
        a(f"v_xor_b32 v{V_T}, v{V_T}, v{V_T+1}")
        a(f"v_lshlrev_b32 v{V_T+1}, 4, v{V_T}")
        a(f"v_add_u32 v{V_OFFA1}, v{V_OFFA0}, v{V_T+1}")
        a(f"v_xor_b32 v{V_T+1}, 64, v{V_T+1}")
        a(f"v_add_u32 v{V_T+2}, v{V_OFFA0}, v{V_T+1}")
        a(f"v_mov_b32 v{V_OFFA0}, v{V_OFFA1}")
        a(f"v_mov_b32 v{V_OFFA1}, v{V_T+2}")
        assert nAw % 2 == 0
    else:
        raise NotImplementedError
    if CPR == 16:
        a(f"v_lshrrev_b32 v{V_T}, 4, v{V_LANE}")
        a(f"v_lshlrev_b32 v{V_T+1}, 2, v{V_T}")
        a(f"v_and_b32 v{V_T+2}, 15, v{V_LANE}")
        a(f"v_xor_b32 v{V_T+1}, v{V_T+1}, v{V_T+2}")
    else:
        a(f"v_lshrrev_b32 v{V_T}, 3, v{V_LANE}")
        a(f"v_lshrrev_b32 v{V_T+1}, 4, v{V_LANE}")
        a(f"v_and_b32 v{V_T+1}, 1, v{V_T+1}")
        a(f"v_lshlrev_b32 v{V_T+1}, 2, v{V_T+1}")
        a(f"v_and_b32 v{V_T+2}, 7, v{V_LANE}")
        a(f"v_xor_b32 v{V_T+1}, v{V_T+1}, v{V_T+2}")
    a(f"s_mov_b32 s{S_T0}, {ldb}")
    a(f"v_mul_lo_u32 v{V_OFFB}, v{V_T}, s{S_T0}")
    a(f"v_lshlrev_b32 v{V_T+1}, 4, v{V_T+1}")
    a(f"v_add_u32 v{V_OFFB}, v{V_OFFB}, v{V_T+1}")
    a(f"s_mul_i32 s{S_T0}, s{S_WAVE}, {rowsA*nAw}")
    a(f"s_add_u32 s{S_T0}, s{S_T0}, s{S_M0T}")
    a(f"s_mul_i32 s{S_OFFA}, s{S_T0}, {lda}")
    a(f"s_mul_i32 s{S_OFFB}, s{S_WAVE}, {rowsB*nBw*ldb}")
    a(f"s_lshl_b32 s{S_T0}, s{S_N0T}, 1")
    a(f"s_add_u32 s{S_OFFB}, s{S_OFFB}, s{S_T0}")
    a(f"s_mul_i32 s{S_LDSA}, s{S_WAVE}, {nAw*1024}")
    a(f"s_mul_i32 s{S_LDSB}, s{S_WAVE}, {nBw*1024}")
    a(f"s_add_u32 s{S_LDSB}, s{S_LDSB}, {A_BYTES}")

    def issue_dma(stage):
        for j in range(nAw):
            a(f"s_add_u32 s{S_T0}, s{S_LDSA}, {stage*ST_BYTES + j*1024}")
            a(f"s_mov_b32 m0, s{S_T0}")
            a(f"s_add_u32 s{S_T1}, s{S_OFFA}, {rowsA*j*lda}")
            vo = V_OFFA0 if j % 2 == 0 else V_OFFA1
            a(f"buffer_load_dwordx4 v{vo}, s[{SRD_A}:{SRD_A+3}], s{S_T1} offen lds")
        for j in range(nBw):
            a(f"s_add_u32 s{S_T0}, s{S_LDSB}, {stage*ST_BYTES + j*1024}")
            a(f"s_mov_b32 m0, s{S_T0}")
            a(f"s_add_u32 s{S_T1}, s{S_OFFB}, {rowsB*j*ldb}")
            a(f"buffer_load_dwordx4 v{V_OFFB}, s[{SRD_B}:{SRD_B+3}], s{S_T1} offen lds")
        a(f"s_add_u32 s{S_OFFA}, s{S_OFFA}, {KC*2}")
        a(f"s_add_u32 s{S_OFFB}, s{S_OFFB}, {KC*ldb}")

    lw = WNn.bit_length() - 1
    a(f"s_lshr_b32 s{S_T0}, s{S_WAVE}, {lw}")
    a(f"s_and_b32 s{S_T1}, s{S_WAVE}, {WNn-1}")
    a(f"s_mul_i32 s{S_T0}, s{S_T0}, {WM}")
    a(f"s_mul_i32 s{S_T1}, s{S_T1}, {WN}")
    a(f"v_and_b32 v{V_T}, 31, v{V_LANE}")
    a(f"v_add_u32 v{V_T}, s{S_T0}, v{V_T}")
    a(f"v_lshlrev_b32 v{V_T}, {AROW.bit_length()-1}, v{V_T}")
    a(f"v_lshrrev_b32 v{V_T+1}, 5, v{V_LANE}")
    a(f"v_lshrrev_b32 v{V_T+2}, 1, v{V_LANE}")
    a(f"v_and_b32 v{V_T+2}, 7, v{V_T+2}")
    a(f"v_xor_b32 v{V_T+1}, v{V_T+1}, v{V_T+2}")
    for ks in range(NKS):
        a(f"v_xor_b32 v{V_T+2}, {2*ks}, v{V_T+1}")
        a(f"v_lshl_add_u32 v{V_AADDR+ks}, v{V_T+2}, 4, v{V_T}")
    a(f"v_lshrrev_b32 v{V_T}, 5, v{V_LANE}")
    a(f"v_lshlrev_b32 v{V_T}, 3, v{V_T}")
    a(f"v_lshrrev_b32 v{V_T+1}, 2, v{V_LANE}")
    a(f"v_and_b32 v{V_T+1}, 3, v{V_T+1}")
    a(f"v_add_u32 v{V_T}, v{V_T}, v{V_T+1}")
    a(f"v_mul_u32_u24 v{V_T}, {ROWB}, v{V_T}")
    a(f"v_add_u32 v{V_T}, {A_BYTES}, v{V_T}")
    a(f"v_and_b32 v{V_T+2}, 1, v{V_LANE}")
    a(f"v_lshl_add_u32 v{V_T}, v{V_T+2}, 3, v{V_T}")
    if CPR == 16:
        a(f"v_lshlrev_b32 v{V_T+1}, 2, v{V_T+1}")
    else:
        a(f"v_lshrrev_b32 v{V_T+1}, 1, v{V_T+1}")
        a(f"v_lshlrev_b32 v{V_T+1}, 2, v{V_T+1}")
    a(f"v_lshrrev_b32 v{V_T+2}, 4, v{V_LANE}")
    a(f"v_and_b32 v{V_T+2}, 1, v{V_T+2}")
    a(f"v_lshlrev_b32 v{V_T+2}, 1, v{V_T+2}")
    a(f"v_lshrrev_b32 v{V_T+3}, 1, v{V_LANE}")
    a(f"v_and_b32 v{V_T+3}, 1, v{V_T+3}")
    a(f"v_add_u32 v{V_T+2}, v{V_T+2}, v{V_T+3}")
    a(f"s_lshr_b32 s{S_T1}, s{S_T1}, 3")
    a(f"v_add_u32 v{V_T+2}, s{S_T1}, v{V_T+2}")
    for nb in range(NB):
        a(f"v_add_u32 v{V_T+3}, {4*nb}, v{V_T+2}")
        a(f"v_xor_b32 v{V_T+3}, v{V_T+3}, v{V_T+1}")
        a(f"v_lshl_add_u32 v{V_BADDR+nb}, v{V_T+3}, 4, v{V_T}")
    for r in range(nacc):
        a(f"v_mov_b32 v{V_ACC+r}, 0")

    npro = min(dist, NC)
    for c in range(npro):
        issue_dma(c % stages)

    def set_addr(stage, which):
        base = V_ACUR if which == 0 else None
    cur_stage_regs = {}

    def calc_addr(stage):
        for ks in range(NKS):
            a(f"v_add_u32 v{V_ACUR+ks}, {stage*ST_BYTES}, v{V_AADDR+ks}")
        for nb in range(NB):
            a(f"v_add_u32 v{V_BCUR+nb}, {stage*ST_BYTES}, v{V_BADDR+nb}")

    nreads = MB + 2 * NB
    import os
    NOCOMP = os.environ.get("NOCOMP")
    def reads(ks, st):
        if NOCOMP: return
        for mb in range(MB):
            r = V_AF + (st * MB + mb) * 4
            a(f"ds_read_b128 v[{r}:{r+3}], v{V_ACUR+ks} offset:{mb*32*AROW}")
        for nb in range(NB):
            r = V_BF + (st * NB + nb) * 4
            for u in range(2):
                a(f"ds_read_b64_tr_b16 v[{r+2*u}:{r+2*u+1}], v{V_BCUR+nb} offset:{(16*ks+4*u)*ROWB}")
    def mfmas(st):
        if NOCOMP: return
        for nb in range(NB):
            for mb in range(MB):
                acc = V_ACC + (nb * MB + mb) * 16
                ra = V_BF + (st * NB + nb) * 4
                rb = V_AF + (st * MB + mb) * 4
                a(f"v_mfma_f32_32x32x16_bf16 v[{acc}:{acc+15}], v[{ra}:{ra+3}], v[{rb}:{rb+3}], v[{acc}:{acc+15}]")

    a(f"s_waitcnt vmcnt({NDMA*(npro-1)})")
    a("s_barrier")
    calc_addr(0)
    reads(0, 0)

    def outstanding_after_wait(c):
        issued = min(c + dist, NC)
        return NDMA * max(0, issued - (c + 2))

    def chunk(c_stage, c_is_last, issue, vmw, st0):
        st = st0
        nxt = (c_stage + 1) % stages
        if not c_is_last:
            a(f"s_waitcnt vmcnt({vmw})")
            a("s_barrier")
            if issue:
                issue_dma((c_stage + dist) % stages)
        for ks in range(NKS):
            if ks + 1 < NKS:
                reads(ks + 1, st ^ 1)
                a(f"s_waitcnt lgkmcnt({nreads})")
            elif not c_is_last:
                calc_addr(nxt)
                reads(0, st ^ 1)
                a(f"s_waitcnt lgkmcnt({nreads})")
            else:
                a("s_waitcnt lgkmcnt(0)")
            mfmas(st)
            st ^= 1
        return st

    if NC <= 12:
        st = 0
        for c in range(NC):
            st = chunk(c % stages, c == NC - 1, c + dist < NC, outstanding_after_wait(c), st)
    else:
        assert NKS % 2 == 0
        n_issue = NC - dist
        ngroups = n_issue // stages
        a(f"s_mov_b32 s{S_CNT}, {ngroups}")
        a.label(f"{name}_loop")
        st = 0
        for s in range(stages):
            st = chunk(s, False, True, NDMA * (dist - 2), st)
        assert st == 0
        a(f"s_sub_u32 s{S_CNT}, s{S_CNT}, 1")
        a(f"s_cmp_lg_u32 s{S_CNT}, 0")
        a(f"s_cbranch_scc1 {name}_loop")
        for c in range(ngroups * stages, NC):
            st = chunk(c % stages, c == NC - 1, c + dist < NC, outstanding_after_wait(c), st)

    a("s_nop 7"); a("s_nop 7")
    a(f"s_lshr_b32 s{S_T0}, s{S_WAVE}, {lw}")
    a(f"s_and_b32 s{S_T1}, s{S_WAVE}, {WNn-1}")
    a(f"s_mul_i32 s{S_T0}, s{S_T0}, {WM}")
    a(f"s_mul_i32 s{S_T1}, s{S_T1}, {WN*2}")
    a(f"v_and_b32 v{V_T}, 31, v{V_LANE}")
    a(f"v_add_u32 v{V_T}, s{S_T0}, v{V_T}")
    a(f"s_mov_b32 s{S_T2}, {ldc}")
    a(f"v_mul_lo_u32 v{V_OFFC}, v{V_T}, s{S_T2}")
    a(f"v_lshrrev_b32 v{V_T}, 5, v{V_LANE}")
    a(f"v_lshl_add_u32 v{V_OFFC}, v{V_T}, 3, v{V_OFFC}")
    a(f"v_add_u32 v{V_OFFC}, s{S_T1}, v{V_OFFC}")
    for mb in range(MB):
        a(f"s_add_u32 s{S_T0}, s{S_M0T}, {32*mb}")
        a(f"s_mul_i32 s{S_COFF+mb}, s{S_T0}, {ldc}")
        a(f"s_lshl_b32 s{S_T0}, s{S_N0T}, 1")
        a(f"s_add_u32 s{S_COFF+mb}, s{S_COFF+mb}, s{S_T0}")
    k = 0
    for nb in range(NB):
        for mb in range(MB):
            acc = V_ACC + (nb * MB + mb) * 16
            for g in range(4):
                t = V_AF + 2 * (k % 8); k += 1
                a(f"v_cvt_pk_bf16_f32 v{t}, v{acc+4*g}, v{acc+4*g+1}")
                a(f"v_cvt_pk_bf16_f32 v{t+1}, v{acc+4*g+2}, v{acc+4*g+3}")
                a(f"buffer_store_dwordx2 v[{t}:{t+1}], v{V_OFFC}, s[{SRD_C}:{SRD_C+3}], s{S_COFF+mb} offen offset:{(nb*32+8*g)*2}")
    a.label(f"{name}_done")
    a("s_endpgm")
    return a.text(), V_END, lds_total, ntiles


def gen_gemm_ks(name, M, N, K, TN, a_src, b_src, c_dst, lda, ldb, ldc, stages):
    TM = 64
    assert TN == 64
    KC = 64
    NC = K // KC
    assert K % KC == 0
    NB, MB = 2, 2
    AROW = 128
    A_BYTES = TM * AROW
    ROWB = 128
    B_BYTES = KC * ROWB
    ST_BYTES = A_BYTES + B_BYTES
    nAw, nBw = 2, 2
    NDMA = 4
    NTM, NTN = M // TM, N // TN
    ntiles = NTM * NTN
    lds_total = stages * ST_BYTES
    assert lds_total >= 65536
    a = Asm()
    SRD_A, SRD_B, SRD_C = 4, 8, 12
    S_M0T, S_N0T, S_WAVE = 16, 17, 18
    S_OFFA, S_OFFB = 20, 21
    S_T0, S_T1, S_T2 = 22, 23, 24
    S_CNT = 25
    S_LDSA, S_LDSB = 26, 27
    S_COFF = 28
    V_LANE = 1
    V_OFFA0, V_OFFA1, V_OFFB = 2, 3, 4
    V_OFFC = 5
    V_T = 6
    V_AAD = 10
    V_BAD = 11
    V_AF = 16
    V_BF = 24
    V_ACC = 32
    V_RED = 96
    V_END = 100

    a(f"s_cmp_ge_u32 s2, {ntiles}")
    a(f"s_cbranch_scc1 {name}_done")
    a(f"s_load_dwordx2 s[{SRD_A}:{SRD_A+1}], s[0:1], {a_src[0]}")
    a(f"s_load_dwordx2 s[{SRD_B}:{SRD_B+1}], s[0:1], {b_src[0]}")
    a(f"s_load_dwordx2 s[{SRD_C}:{SRD_C+1}], s[0:1], {c_dst[0]}")
    a(f"s_and_b32 s{S_M0T}, s2, {NTM-1}")
    a(f"s_lshr_b32 s{S_N0T}, s2, {NTM.bit_length()-1}")
    a(f"s_mul_i32 s{S_M0T}, s{S_M0T}, {TM}")
    a(f"s_mul_i32 s{S_N0T}, s{S_N0T}, {TN}")
    a(f"v_lshrrev_b32 v{V_T}, 6, v0")
    a(f"v_and_b32 v{V_LANE}, 63, v0")
    a("s_nop 0")
    a(f"v_readfirstlane_b32 s{S_WAVE}, v{V_T}")
    a("s_waitcnt lgkmcnt(0)")
    for sd, src in ((SRD_A, a_src), (SRD_B, b_src), (SRD_C, c_dst)):
        if src[1]:
            a(f"s_add_u32 s{sd}, s{sd}, {src[1]}")
            a(f"s_addc_u32 s{sd+1}, s{sd+1}, 0")
        a(f"s_and_b32 s{sd+1}, s{sd+1}, 0xffff")
        a(f"s_mov_b32 s{sd+2}, {src[2]}")
        a(f"s_mov_b32 s{sd+3}, 0x00020000")
    a(f"v_lshrrev_b32 v{V_T}, 3, v{V_LANE}")
    a(f"s_mov_b32 s{S_T0}, {lda}")
    a(f"v_mul_lo_u32 v{V_OFFA0}, v{V_T}, s{S_T0}")
    a(f"v_and_b32 v{V_T}, 7, v{V_LANE}")
    a(f"v_lshrrev_b32 v{V_T+1}, 4, v{V_LANE}")
    a(f"v_xor_b32 v{V_T}, v{V_T}, v{V_T+1}")
    a(f"v_lshlrev_b32 v{V_T+1}, 4, v{V_T}")
    a(f"v_add_u32 v{V_OFFA1}, v{V_OFFA0}, v{V_T+1}")
    a(f"v_xor_b32 v{V_T+1}, 64, v{V_T+1}")
    a(f"v_add_u32 v{V_T+2}, v{V_OFFA0}, v{V_T+1}")
    a(f"v_mov_b32 v{V_OFFA0}, v{V_OFFA1}")
    a(f"v_mov_b32 v{V_OFFA1}, v{V_T+2}")
    a(f"v_lshrrev_b32 v{V_T}, 3, v{V_LANE}")
    a(f"v_lshrrev_b32 v{V_T+1}, 4, v{V_LANE}")
    a(f"v_and_b32 v{V_T+1}, 1, v{V_T+1}")
    a(f"v_lshlrev_b32 v{V_T+1}, 2, v{V_T+1}")
    a(f"v_and_b32 v{V_T+2}, 7, v{V_LANE}")
    a(f"v_xor_b32 v{V_T+1}, v{V_T+1}, v{V_T+2}")
    a(f"s_mov_b32 s{S_T0}, {ldb}")
    a(f"v_mul_lo_u32 v{V_OFFB}, v{V_T}, s{S_T0}")
    a(f"v_lshlrev_b32 v{V_T+1}, 4, v{V_T+1}")
    a(f"v_add_u32 v{V_OFFB}, v{V_OFFB}, v{V_T+1}")
    a(f"s_mul_i32 s{S_T0}, s{S_WAVE}, {8*nAw}")
    a(f"s_add_u32 s{S_T0}, s{S_T0}, s{S_M0T}")
    a(f"s_mul_i32 s{S_OFFA}, s{S_T0}, {lda}")
    a(f"s_mul_i32 s{S_OFFB}, s{S_WAVE}, {8*nBw*ldb}")
    a(f"s_lshl_b32 s{S_T0}, s{S_N0T}, 1")
    a(f"s_add_u32 s{S_OFFB}, s{S_OFFB}, s{S_T0}")
    a(f"s_mul_i32 s{S_LDSA}, s{S_WAVE}, {nAw*1024}")
    a(f"s_mul_i32 s{S_LDSB}, s{S_WAVE}, {nBw*1024}")
    a(f"s_add_u32 s{S_LDSB}, s{S_LDSB}, {A_BYTES}")

    def issue_dma(stage):
        for j in range(nAw):
            a(f"s_add_u32 s{S_T0}, s{S_LDSA}, {stage*ST_BYTES + j*1024}")
            a(f"s_mov_b32 m0, s{S_T0}")
            a(f"s_add_u32 s{S_T1}, s{S_OFFA}, {8*j*lda}")
            vo = V_OFFA0 if j % 2 == 0 else V_OFFA1
            a(f"buffer_load_dwordx4 v{vo}, s[{SRD_A}:{SRD_A+3}], s{S_T1} offen lds")
        for j in range(nBw):
            a(f"s_add_u32 s{S_T0}, s{S_LDSB}, {stage*ST_BYTES + j*1024}")
            a(f"s_mov_b32 m0, s{S_T0}")
            a(f"s_add_u32 s{S_T1}, s{S_OFFB}, {8*j*ldb}")
            a(f"buffer_load_dwordx4 v{V_OFFB}, s[{SRD_B}:{SRD_B+3}], s{S_T1} offen lds")
        a(f"s_add_u32 s{S_OFFA}, s{S_OFFA}, {KC*2}")
        a(f"s_add_u32 s{S_OFFB}, s{S_OFFB}, {KC*ldb}")

    a(f"v_and_b32 v{V_T}, 31, v{V_LANE}")
    a(f"v_lshlrev_b32 v{V_T}, 7, v{V_T}")
    a(f"v_lshrrev_b32 v{V_T+1}, 5, v{V_LANE}")
    a(f"v_lshrrev_b32 v{V_T+2}, 1, v{V_LANE}")
    a(f"v_and_b32 v{V_T+2}, 7, v{V_T+2}")
    a(f"v_xor_b32 v{V_T+1}, v{V_T+1}, v{V_T+2}")
    a(f"s_lshl_b32 s{S_T2}, s{S_WAVE}, 1")
    a(f"v_xor_b32 v{V_T+2}, s{S_T2}, v{V_T+1}")
    a(f"v_lshl_add_u32 v{V_AAD}, v{V_T+2}, 4, v{V_T}")
    a(f"v_lshrrev_b32 v{V_T}, 5, v{V_LANE}")
    a(f"v_lshlrev_b32 v{V_T}, 3, v{V_T}")
    a(f"v_lshrrev_b32 v{V_T+1}, 2, v{V_LANE}")
    a(f"v_and_b32 v{V_T+1}, 3, v{V_T+1}")
    a(f"v_add_u32 v{V_T}, v{V_T}, v{V_T+1}")
    a(f"s_lshl_b32 s{S_T2}, s{S_WAVE}, 4")
    a(f"v_add_u32 v{V_T}, s{S_T2}, v{V_T}")
    a(f"v_lshlrev_b32 v{V_T}, 7, v{V_T}")
    a(f"v_add_u32 v{V_T}, {A_BYTES}, v{V_T}")
    a(f"v_and_b32 v{V_T+2}, 1, v{V_LANE}")
    a(f"v_lshl_add_u32 v{V_T}, v{V_T+2}, 3, v{V_T}")
    a(f"v_lshrrev_b32 v{V_T+1}, 1, v{V_T+1}")
    a(f"v_lshlrev_b32 v{V_T+1}, 2, v{V_T+1}")
    a(f"v_lshrrev_b32 v{V_T+2}, 4, v{V_LANE}")
    a(f"v_and_b32 v{V_T+2}, 1, v{V_T+2}")
    a(f"v_lshlrev_b32 v{V_T+2}, 1, v{V_T+2}")
    a(f"v_lshrrev_b32 v{V_T+3}, 1, v{V_LANE}")
    a(f"v_and_b32 v{V_T+3}, 1, v{V_T+3}")
    a(f"v_add_u32 v{V_T+2}, v{V_T+2}, v{V_T+3}")
    for nb in range(NB):
        a(f"v_add_u32 v{V_T+3}, {4*nb}, v{V_T+2}")
        a(f"v_xor_b32 v{V_T+3}, v{V_T+3}, v{V_T+1}")
        a(f"v_lshl_add_u32 v{V_BAD+nb}, v{V_T+3}, 4, v{V_T}")
    for r in range(64):
        a(f"v_mov_b32 v{V_ACC+r}, 0")

    dist = stages - 1
    for c in range(dist):
        issue_dma(c % stages)

    def outstanding(c):
        issued = min(c + dist, NC)
        return NDMA * max(0, issued - (c + 1))
    def step(c, issue, vmw):
        a(f"s_waitcnt vmcnt({vmw})")
        a("s_barrier")
        if issue:
            issue_dma((c + dist) % stages)
        stage = c % stages
        a(f"v_add_u32 v{V_T}, {stage*ST_BYTES}, v{V_AAD}")
        for mb in range(MB):
            r = V_AF + mb*4
            a(f"ds_read_b128 v[{r}:{r+3}], v{V_T} offset:{mb*4096}")
        for nb in range(NB):
            a(f"v_add_u32 v{V_T+1+nb}, {stage*ST_BYTES}, v{V_BAD+nb}")
            for u in range(2):
                r = V_BF + nb*4 + 2*u
                a(f"ds_read_b64_tr_b16 v[{r}:{r+1}], v{V_T+1+nb} offset:{4*u*ROWB}")
        a("s_waitcnt lgkmcnt(0)")
        for nb in range(NB):
            for mb in range(MB):
                acc = V_ACC + (nb*MB+mb)*16
                ra = V_BF + nb*4
                rb = V_AF + mb*4
                a(f"v_mfma_f32_32x32x16_bf16 v[{acc}:{acc+15}], v[{ra}:{ra+3}], v[{rb}:{rb+3}], v[{acc}:{acc+15}]")

    n_issue = NC - dist
    ngroups = n_issue // stages
    a(f"s_mov_b32 s{S_CNT}, {ngroups}")
    a.label(f"{name}_loop")
    for s_ in range(stages):
        step(s_, True, NDMA * (dist - 1))
    a(f"s_sub_u32 s{S_CNT}, s{S_CNT}, 1")
    a(f"s_cmp_lg_u32 s{S_CNT}, 0")
    a(f"s_cbranch_scc1 {name}_loop")
    for c in range(ngroups * stages, NC):
        step(c, c + dist < NC, outstanding(c))

    a("s_nop 7"); a("s_nop 7")
    a("s_barrier")
    a(f"v_lshlrev_b32 v{V_T}, 2, v{V_LANE}")
    a(f"s_lshl_b32 s{S_T0}, s{S_WAVE}, 14")
    a(f"v_add_u32 v{V_T}, s{S_T0}, v{V_T}")
    for r in range(64):
        a(f"ds_write_b32 v{V_T}, v{V_ACC+r} offset:{256*r}")
    a("s_waitcnt lgkmcnt(0)")
    a("s_barrier")
    a(f"v_lshlrev_b32 v{V_T+1}, 2, v{V_LANE}")
    a(f"s_mul_i32 s{S_T0}, s{S_WAVE}, {16*256}")
    a(f"v_add_u32 v{V_T+1}, s{S_T0}, v{V_T+1}")
    for r in range(16):
        for p in range(4):
            a(f"ds_read_b32 v{V_RED+p}, v{V_T+1} offset:{p*16384 + 256*r}")
        a("s_waitcnt lgkmcnt(0)")
        a(f"v_add_f32 v{V_RED}, v{V_RED}, v{V_RED+1}")
        a(f"v_add_f32 v{V_RED+2}, v{V_RED+2}, v{V_RED+3}")
        a(f"v_add_f32 v{V_ACC+r}, v{V_RED}, v{V_RED+2}")
    a(f"v_and_b32 v{V_T}, 31, v{V_LANE}")
    a(f"s_mov_b32 s{S_T2}, {ldc}")
    a(f"v_mul_lo_u32 v{V_OFFC}, v{V_T}, s{S_T2}")
    a(f"v_lshrrev_b32 v{V_T}, 5, v{V_LANE}")
    a(f"v_lshl_add_u32 v{V_OFFC}, v{V_T}, 3, v{V_OFFC}")
    a(f"s_and_b32 s{S_T1}, s{S_WAVE}, 1")
    a(f"s_lshr_b32 s{S_T0}, s{S_WAVE}, 1")
    a(f"s_mul_i32 s{S_COFF}, s{S_T1}, {32*ldc}")
    a(f"s_mul_i32 s{S_T0}, s{S_T0}, {64}")
    a(f"s_add_u32 s{S_COFF}, s{S_COFF}, s{S_T0}")
    a(f"s_mul_i32 s{S_T0}, s{S_M0T}, {ldc}")
    a(f"s_add_u32 s{S_COFF}, s{S_COFF}, s{S_T0}")
    a(f"s_lshl_b32 s{S_T0}, s{S_N0T}, 1")
    a(f"s_add_u32 s{S_COFF}, s{S_COFF}, s{S_T0}")
    for g in range(4):
        t = V_BF + 2*g
        a(f"v_cvt_pk_bf16_f32 v{t}, v{V_ACC+4*g}, v{V_ACC+4*g+1}")
        a(f"v_cvt_pk_bf16_f32 v{t+1}, v{V_ACC+4*g+2}, v{V_ACC+4*g+3}")
        a(f"buffer_store_dwordx2 v[{t}:{t+1}], v{V_OFFC}, s[{SRD_C}:{SRD_C+3}], s{S_COFF} offen offset:{16*g}")
    a.label(f"{name}_done")
    a("s_endpgm")
    return a.text(), V_END, lds_total, ntiles
```

```python
import sys
sys.path.insert(0, "dev")
from gen_common import *
from gen_gemm import gen_gemm

HEADER = """; Kernarg layout for this problem (64 bytes, ptrs only, base s[0:1]):
"""
Q_OFF, O_OFF = 0, 8 * 1024 * 1024

def build(which):
    launches = []
    code = []
    foot = []
    if "q" in which:
        n = "qproj_kernel"
        body, v, lds, nt = gen_gemm(n, 1024, 4096, 576, 128, 128, 2,
                                    (KA_X, 0, 1024 * 576 * 2), (KA_WQ, 0, 576 * 4096 * 2), (KA_WS, Q_OFF, 8 * 1024 * 1024),
                                    576 * 2, 4096 * 2, 4096 * 2, 5)
        launches.append(f"; @launch kernel={n} grid=({nt},1,1) block=(256,1,1) lds={lds}")
        code.append(kernel_header(n) + body); foot.append(kernel_footer(n, v))
    if "a" in which:
        if '5' in which:
            from gen_attn5 import gen_attn
        else:
            from gen_attn import gen_attn
        n = "attn_kernel"
        body, v, lds, nt, acc = gen_attn(n, nocompute=('C' in which), nodma=('D' in which), nt=('N' in which), rot=('R' in which))
        launches.append(f"; @launch kernel={n} grid=({nt},1,1) block=(512,1,1) lds={lds}")
        code.append(kernel_header(n) + body); foot.append(kernel_footer(n, v, accum=acc))
    if "o" in which:
        n = "oproj_kernel"
        body, v, lds, nt = gen_gemm(n, 1024, 576, 4096, 64, 64, 2,
                                    (KA_WS, O_OFF, 1024 * 8320), (KA_WO, 0, 4096 * 576 * 2), (KA_OUT, 0, 1024 * 576 * 2),
                                    8320, 576 * 2, 576 * 2, 6)
        launches.append(f"; @launch kernel={n} grid=({nt},1,1) block=(256,1,1) lds={lds}")
        code.append(kernel_header(n) + body); foot.append(kernel_footer(n, v))
    return HEADER + "\n".join(launches) + '\n.amdgcn_target "amdgcn-amd-amdhsa--gfx950"\n' + "".join(code) + "".join(foot)

if __name__ == "__main__":
    which = sys.argv[1] if len(sys.argv) > 1 else "qao"
    out = sys.argv[2] if len(sys.argv) > 2 else "k.s"
    open(out, "w").write(build(which))
    print("wrote", out)
```
